```python
import torch

def _softmax(x, axis=-1):
    return torch.softmax(x, dim=axis)
def _gelu(x):
    return torch.nn.functional.gelu(x, approximate="tanh")
def _silu(x):
    return torch.nn.functional.silu(x)
def _sigmoid(x):
    return torch.sigmoid(x)
def _layernorm(x, axis=-1, eps=1e-5):
    m = x.mean(dim=axis, keepdim=True)
    v = x.var(dim=axis, keepdim=True, unbiased=False)
    return (x - m) / torch.sqrt(v + eps)
def _scatter_add(tgt, idx, src, axis=0):
    return tgt.clone().index_add_(axis, idx, src)
def _segment_sum(src, seg, n):
    out = torch.zeros((n,) + src.shape[1:], dtype=src.dtype)
    return out.index_add_(0, seg, src)
def _pad(x, pw):
    flat = tuple(v for pair in reversed(pw) for v in pair)
    return torch.nn.functional.pad(x, flat)

kernel_name = 'standalone__gqa_block_cached__near_ridge'

def setup_inputs():

    _w = (lambda a: (lambda t: t.to(torch.bfloat16) if t.is_floating_point() else t)(torch.as_tensor(a)))
    B, Sq, D = 8, 192, 512
    Hq, Hkv, Sk, Dh = 32, 32, 1024, 128
    assert Hq % Hkv == 0, (Hq, Hkv)
    return {
        "x": _w((lambda *s: torch.randn(*s, dtype=torch.bfloat16) * 0.8)(B, Sq, D)),
        "k_cache": _w((lambda *s: torch.randn(*s, dtype=torch.bfloat16) * 0.8)(B, Hkv, Sk, Dh)),
        "v_cache": _w((lambda *s: torch.randn(*s, dtype=torch.bfloat16) * 0.05)(B, Hkv, Sk, Dh)),
        "wq": _w((lambda *s: torch.randn(*s, dtype=torch.bfloat16) * 0.8)(D, Hq * Dh) * (D ** -0.5)),
        "wo": _w((lambda *s: torch.randn(*s, dtype=torch.bfloat16) * 0.05)(Hq * Dh, D) * ((Hq * Dh) ** -0.5)),
    }

def reference(x, k_cache, v_cache, wq, wo):
    B, Sq, D = x.shape
    Hq, Dh = 32, 128
    Hkv = k_cache.shape[1]
    rep = Hq // Hkv
    q = (lambda x, *d: x.permute(*d))((x @ wq).reshape(B, Sq, Hq, Dh), 0, 2, 1, 3)
    k = (lambda x, n, axis: torch.repeat_interleave(x, n, dim=axis))(k_cache, rep, axis=1)
    v = (lambda x, n, axis: torch.repeat_interleave(x, n, dim=axis))(v_cache, rep, axis=1)
    scores = torch.einsum("bhqd,bhkd->bhqk", q, k) * (Dh ** -0.5)
    p = _softmax(scores, axis=-1)
    o = torch.einsum("bhqk,bhkd->bhqd", p, v)
    return (lambda x, *d: x.permute(*d))(o, 0, 2, 1, 3).reshape(B, Sq, Hq * Dh) @ wo
```

```python
import sys
import math
import struct

NAME = "standalone__gqa_block_cached__near_ridge"


def f32bits(x):
    return struct.unpack("<I", struct.pack("<f", x))[0]


class A:
    def __init__(self):
        self.l = []

    def __call__(self, s):
        self.l.append("    " + s)

    def label(self, s):
        self.l.append(s + ":")

    def c(self, s):
        self.l.append("    ; " + s)

    def ext(self, items):
        for s in items:
            self(s)

    def text(self):
        return "\n".join(self.l) + "\n"


def vr(b, n=1):
    return f"v{b}" if n == 1 else f"v[{b}:{b+n-1}]"


def ar(b, n=1):
    return f"a{b}" if n == 1 else f"a[{b}:{b+n-1}]"


def sr(b, n=1):
    return f"s{b}" if n == 1 else f"s[{b}:{b+n-1}]"


MFMA = "v_mfma_f32_32x32x16_bf16"

KPS = 1040
KSLOT = 16 * KPS
VSLOT = 16384
KBASE = 0
VBASE = 4 * KSLOT
SPARE = VBASE + 4 * VSLOT
WQ0 = 2 * KSLOT
WQB = 16384
X0 = VBASE + 2 * VSLOT
XB = 24 * KPS
QEX = X0
WOST = SPARE
EX_ML = 98304
LDS1 = 163840

WS_O = 0
WS_WOT = 16 << 20
WS_DIAG = 32 << 20
WS_SIZE = 64 << 20

SCALE = math.log2(math.e) / math.sqrt(128.0)


def interleave(mf, fillers):
    out = []
    for i, m in enumerate(mf):
        out.append(m)
        out.extend(fillers.get(i, []))
    return out


def gen_attn(a, opt):
    diag = opt.get("diag", False)
    S_X, S_WQ, S_K, S_V, S_WO, S_WS = 16, 20, 24, 28, 32, 36
    sW, sQH, sKH, sB, sH = 40, 41, 42, 43, 44
    sT, sFloor, sFirst, sI = 45, 46, 47, 48
    sKg, sVg = 49, 50
    sKl, sVl = 51, 52
    sRK, sRV = 53, 54
    sA, sBt, sC = 55, 56, 57
    sSt = 60
    vL = 1
    vDmaKV, vDmaWq, vDmaX = 2, 3, 4
    vKlane, vVAl, vVBl = 5, 6, 7
    vKa, vVA, vVB = 8, 9, 10
    vLs = 11
    vMx = 14
    vT0 = 15
    OK = 16
    SB = 112
    PB = 160
    CI = 184
    vTmp = 232
    vXl, vWl = 232, 233
    vL16 = 234
    OS = 0
    QF = 96
    KF = 192
    VF = 224

    nstamp = [0]

    def stamp():
        if diag:
            a(f"s_memtime {sr(sSt + 2 * nstamp[0], 2)}")
            nstamp[0] += 1

    a.label("attn_kernel")
    a("s_cmp_ge_u32 s2, 256")
    a("s_cbranch_scc1 L_attn_end")
    a("s_load_dwordx4 s[4:7], s[0:1], 0")
    a("s_load_dwordx4 s[8:11], s[0:1], 16")
    a("s_load_dwordx2 s[12:13], s[0:1], 32")
    a("s_load_dwordx2 s[14:15], s[0:1], 56")
    if diag:
        a(f"s_memrealtime {sr(58, 2)}")
    stamp()
    a(f"v_lshrrev_b32 v15, 6, v0")
    a(f"v_and_b32 {vr(vL)}, 63, v0")
    a(f"s_and_b32 {sr(sA)}, s2, 7")
    a(f"v_readfirstlane_b32 {sr(sW)}, v15")
    if opt.get("xcd_batch", False):
        a(f"s_mov_b32 {sr(sB)}, {sr(sA)}")
        a(f"s_lshr_b32 {sr(sH)}, s2, 3")
    else:
        a(f"s_lshl_b32 {sr(sA)}, {sr(sA)}, 2")
        a(f"s_bfe_u32 {sr(sBt)}, s2, 0x20003")
        a(f"s_add_u32 {sr(sH)}, {sr(sA)}, {sr(sBt)}")
        a(f"s_lshr_b32 {sr(sB)}, s2, 5")
    a(f"s_lshr_b32 {sr(sQH)}, {sr(sW)}, 1")
    a(f"s_and_b32 {sr(sKH)}, {sr(sW)}, 1")
    a(f"v_and_b32 v15, 3, {vr(vL)}")
    a(f"v_lshlrev_b32 v15, 4, v15")
    a(f"v_lshrrev_b32 v14, 4, {vr(vL)}")
    a(f"v_lshl_add_u32 v14, v14, 6, v15")
    a(f"v_bfe_u32 v13, {vr(vL)}, 2, 2")
    a(f"v_lshl_add_u32 {vr(vDmaKV)}, v13, 8, v14")
    a(f"v_lshl_add_u32 {vr(vDmaWq)}, v13, 13, v14")
    a(f"v_lshrrev_b32 v12, 5, {vr(vL)}")
    a(f"v_lshl_add_u32 v14, v12, 6, v15")
    a(f"v_bfe_u32 v11, {vr(vL)}, 2, 3")
    a(f"v_lshl_add_u32 {vr(vDmaX)}, v11, 10, v14")
    a("s_waitcnt lgkmcnt(0)")
    a(f"s_mul_i32 {sr(sA)}, {sr(sB)}, 196608")
    a(f"s_add_u32 {sr(S_X)}, s4, {sr(sA)}")
    a(f"s_addc_u32 {sr(S_X+1)}, s5, 0")
    a(f"s_mov_b32 {sr(S_X+2)}, 196608")
    a(f"s_mov_b32 {sr(S_X+3)}, 0x20000")
    a(f"s_lshl_b32 {sr(sA)}, {sr(sH)}, 8")
    a(f"s_add_u32 {sr(S_WQ)}, s10, {sr(sA)}")
    a(f"s_addc_u32 {sr(S_WQ+1)}, s11, 0")
    a(f"s_sub_u32 {sr(S_WQ+2)}, 0x400000, {sr(sA)}")
    a(f"s_mov_b32 {sr(S_WQ+3)}, 0x20000")
    a(f"s_lshl_b32 {sr(sA)}, {sr(sB)}, 5")
    a(f"s_add_u32 {sr(sA)}, {sr(sA)}, {sr(sH)}")
    a(f"s_lshl_b32 {sr(sA)}, {sr(sA)}, 18")
    a(f"s_add_u32 {sr(S_K)}, s6, {sr(sA)}")
    a(f"s_addc_u32 {sr(S_K+1)}, s7, 0")
    a(f"s_mov_b32 {sr(S_K+2)}, 0x40000")
    a(f"s_mov_b32 {sr(S_K+3)}, 0x20000")
    a(f"s_add_u32 {sr(S_V)}, s8, {sr(sA)}")
    a(f"s_addc_u32 {sr(S_V+1)}, s9, 0")
    a(f"s_mov_b32 {sr(S_V+2)}, 0x40000")
    a(f"s_mov_b32 {sr(S_V+3)}, 0x20000")

    ntkv = " nt" if opt.get("nt_kv", False) else ""

    sXg, sXld, sWg, sWld, sPg, sPkl = 90, 91, 92, 93, 94, 95
    a(f"s_mul_i32 {sr(sXg)}, {sr(sW)}, {6*8192}")
    a(f"s_mul_i32 {sr(sXld)}, {sr(sW)}, {6*KPS}")
    a(f"s_mul_i32 {sr(sWg)}, {sr(sW)}, {16*8192}")
    a(f"s_lshl_b32 {sr(sWld)}, {sr(sW)}, 12")
    a(f"s_lshl_b32 {sr(sPg)}, {sr(sW)}, 10")
    a(f"s_mul_i32 {sr(sPkl)}, {sr(sW)}, {KPS}")

    def qgroup(s):
        buf = s & 1
        items = []
        for p in range(4):
            items.append([
                f"s_add_u32 m0, {sr(sWld)}, {WQ0 + buf*WQB + p*1024}",
                f"s_add_u32 {sr(sA)}, {sr(sWg)}, {(64*s + 4*p)*8192}",
                f"buffer_load_dwordx4 {vr(vDmaWq)}, {sr(S_WQ,4)}, {sr(sA)} offen lds"])
        for p in range(6):
            items.append([
                f"s_add_u32 m0, {sr(sXld)}, {X0 + buf*XB + p*KPS}",
                f"s_add_u32 {sr(sA)}, {sr(sXg)}, {p*8192 + s*128}",
                f"buffer_load_dwordx4 {vr(vDmaX)}, {sr(S_X,4)}, {sr(sA)} offen lds"])
        items.append([
            f"s_add_u32 m0, {sr(sPkl)}, {KBASE + 4*s*KPS}",
            f"s_add_u32 {sr(sA)}, {sr(sPg)}, {4*s*1024}",
            f"buffer_load_dwordx4 {vr(vDmaKV)}, {sr(S_K,4)}, {sr(sA)} offen{ntkv} lds"])
        items.append([
            f"s_add_u32 m0, {sr(sPg)}, {VBASE + 4*s*1024}",
            f"s_nop 0",
            f"buffer_load_dwordx4 {vr(vDmaKV)}, {sr(S_V,4)}, {sr(sA)} offen{ntkv} lds"])
        return items

    for s in (0, 1):
        for it in qgroup(s):
            a.ext(it)

    a(f"s_lshl_b32 {sr(sA)}, s2, 14")
    a(f"s_add_u32 {sr(S_WO)}, s12, {sr(sA)}")
    a(f"s_addc_u32 {sr(S_WO+1)}, s13, 0")
    a(f"s_mov_b32 {sr(S_WO+2)}, 16384")
    a(f"s_mov_b32 {sr(S_WO+3)}, 0x20000")
    a(f"s_mov_b32 {sr(S_WS)}, s14")
    a(f"s_mov_b32 {sr(S_WS+1)}, s15")
    a(f"s_mov_b32 {sr(S_WS+2)}, {WS_SIZE}")
    a(f"s_mov_b32 {sr(S_WS+3)}, 0x20000")
    a(f"v_bfe_u32 v11, {vr(vL)}, 2, 3")
    a(f"v_mul_u32_u24 v11, {KPS}, v11")
    a(f"v_and_b32 v14, 3, {vr(vL)}")
    a(f"v_lshl_add_u32 v11, v14, 6, v11")
    a(f"v_lshl_add_u32 v11, v12, 4, v11")
    a(f"s_mul_i32 {sr(sA)}, {sr(sKH)}, {8*KPS}")
    a(f"v_add_u32 {vr(vKlane)}, {sr(sA)}, v11")
    a(f"v_and_b32 v14, 1, {vr(vL)}")
    a(f"v_lshlrev_b32 v14, 4, v14")
    a(f"v_bfe_u32 v15, {vr(vL)}, 1, 1")
    a(f"v_lshl_add_u32 v14, v15, 3, v14")
    a(f"v_bfe_u32 v15, {vr(vL)}, 4, 1")
    a(f"v_lshl_add_u32 v14, v15, 5, v14")
    a(f"v_lshl_add_u32 v14, v13, 6, v14")
    a(f"v_lshl_add_u32 v15, v12, 10, v14")
    a(f"s_mul_i32 {sr(sA)}, {sr(sKH)}, {8192+512}")
    a(f"s_add_u32 {sr(sA)}, {sr(sA)}, {VBASE}")
    a(f"v_add_u32 {vr(vVAl)}, {sr(sA)}, v15")
    a(f"s_mul_i32 {sr(sA)}, {sr(sKH)}, {8192-512}")
    a(f"s_add_u32 {sr(sA)}, {sr(sA)}, {VBASE+512}")
    a(f"v_add_u32 {vr(vVBl)}, {sr(sA)}, v15")
    a(f"v_lshl_add_u32 v15, v12, 11, v14")
    a(f"s_lshl_b32 {sr(sA)}, {sr(sKH)}, 9")
    a(f"v_add_u32 {vr(vWl)}, {sr(sA)}, v15")
    vWo = 235
    a(f"s_add_u32 {sr(sA)}, {sr(sWld)}, {WOST}")
    a(f"v_add_u32 {vr(vWo)}, {sr(sA)}, v15")
    a(f"v_bfe_u32 v11, {vr(vL)}, 3, 2")
    a(f"v_mul_u32_u24 v11, {KPS}, v11")
    a(f"v_and_b32 v14, 7, {vr(vL)}")
    a(f"v_lshl_add_u32 v11, v14, 6, v11")
    a(f"v_lshl_add_u32 v11, v12, 4, v11")
    a(f"s_mul_i32 {sr(sA)}, {sr(sQH)}, {12*KPS}")
    a(f"s_add_u32 {sr(sA)}, {sr(sA)}, {X0}")
    a(f"v_add_u32 {vr(vXl)}, {sr(sA)}, v11")
    a(f"v_lshlrev_b32 {vr(vL16)}, 4, {vr(vL)}")

    def xf(r, qt, ks):
        return 80 * r + (qt * 4 + ks) * 4

    def wf(r, dt, ks):
        return 80 * r + 48 + (dt * 4 + ks) * 4

    def qreads(s):
        r = s & 1
        out = []
        for ks in range(4):
            for dt in range(2):
                for i in range(2):
                    out.append(f"ds_read_b64_tr_b16 {ar(wf(r,dt,ks)+2*i,2)}, {vr(vWl)} offset:{WQ0 + r*WQB + (4*ks+i)*1024 + dt*256}")
            for qt in range(3):
                out.append(f"ds_read_b128 {ar(xf(r,qt,ks),4)}, {vr(vXl)} offset:{r*XB + qt*4*KPS + (ks>>1)*512 + (ks&1)*32}")
        return out

    def qacc(qt, dt):
        return OK + (qt * 2 + dt) * 16

    def qmfmas(s):
        r = s & 1
        out = []
        for ks in range(4):
            for dt in range(2):
                for qt in range(3):
                    acc = vr(qacc(qt, dt), 16)
                    c = "0" if (s == 0 and ks == 0) else acc
                    out.append(f"{MFMA} {acc}, {ar(wf(r,dt,ks),4)}, {ar(xf(r,qt,ks),4)}, {c}")
        return out

    a("s_waitcnt vmcnt(14)")
    a("s_barrier")
    stamp()
    a.ext(qreads(0))
    a("s_waitcnt lgkmcnt(0)")
    a("s_barrier")
    for it in qgroup(2):
        a.ext(it)
    for s in range(8):
        mf = qmfmas(s)
        fill = {}
        pre = []
        if s + 1 < 8:
            n = 2 + (12 if s + 2 < 8 else 0)
            pre = [f"s_waitcnt vmcnt({n})", "s_barrier"]
            rd = qreads(s + 1)
            for i, x in enumerate(rd):
                fill.setdefault(i // 3, []).append(x)
            fill.setdefault(11, []).extend(["s_waitcnt lgkmcnt(0)", "s_barrier"])
            if s + 3 < 8:
                for i, it in enumerate(qgroup(s + 3)):
                    fill.setdefault(12 + i, []).extend(it)
            elif s == 6:
                for i in range(8):
                    fill.setdefault(12 + i, []).extend([
                        f"s_add_u32 m0, {sr(sPkl)}, {KBASE + (32 + 4*i)*KPS}",
                        f"s_add_u32 {sr(sA)}, {sr(sPg)}, {(32 + 4*i)*1024}",
                        f"buffer_load_dwordx4 {vr(vDmaKV)}, {sr(S_K,4)}, {sr(sA)} offen{ntkv} lds"])
        a.ext(pre)
        a.ext(interleave(mf, fill))
    stamp()
    a(f"s_mov_b32 {sr(sA)}, {hex(f32bits(SCALE))}")
    a(f"s_mul_i32 {sr(sBt)}, {sr(sW)}, 12288")
    a(f"s_add_u32 {sr(sBt)}, {sr(sBt)}, {QEX}")
    a(f"v_add_u32 v15, {sr(sBt)}, {vr(vL16)}")
    a(f"s_mul_i32 {sr(sBt)}, {sr(sQH)}, 24576")
    a(f"s_add_u32 {sr(sBt)}, {sr(sBt)}, {QEX}")
    a(f"v_add_u32 v14, {sr(sBt)}, {vr(vL16)}")
    for r in range(48):
        a(f"v_mov_b32 {vr(CI+r)}, 0")
    for r in range(24):
        a(f"v_mov_b32 {vr(PB+r)}, 0")
    for j in range(3):
        a(f"v_mov_b32 {vr(vLs+j)}, 0")
    for dt in range(2):
        for qt in range(3):
            acc = qacc(qt, dt)
            for r in range(16):
                a(f"v_mul_f32 {vr(acc+r)}, {sr(sA)}, {vr(acc+r)}")
            for half in range(2):
                t = SB + (qt * 4 + 2 * dt + half) * 4
                for e in range(4):
                    a(f"v_cvt_pk_bf16_f32 {vr(t+e)}, {vr(acc+8*half+2*e)}, {vr(acc+8*half+2*e+1)}")
                a(f"ds_write_b128 v15, {vr(t,4)} offset:{(qt*4+2*dt+half)*1024}")
    a("s_waitcnt lgkmcnt(0)")
    a("s_barrier")
    for qt in range(3):
        for ks in range(8):
            a(f"ds_read_b128 {ar(QF + (qt*8+ks)*4, 4)}, v14 offset:{(ks>>2)*12288 + (qt*4 + (ks&3))*1024}")
    for ks in range(8):
        a(f"ds_read_b128 {ar(KF+4*ks,4)}, {vr(vKlane)} offset:{KBASE + (ks>>1)*256 + (ks&1)*32}")
    for r in range(96):
        a(f"v_mov_b32 {vr(OK+r)}, 0")
    for r in range(96):
        a(f"v_accvgpr_write_b32 {ar(OS+r)}, 0")
    for r in range(32):
        a(f"v_accvgpr_write_b32 {ar(VF+r)}, 0")
    a("s_waitcnt vmcnt(8) lgkmcnt(0)")
    a("s_barrier")
    for p in range(4):
        a(f"s_add_u32 m0, {sr(sWld)}, {WOST + p*1024}")
        a(f"s_lshl_b32 {sr(sA)}, {sr(sW)}, 8")
        a(f"s_add_u32 {sr(sA)}, {sr(sA)}, {p*4096}")
        if p == 0:
            a(f"v_and_b32 v15, 0xff, {vr(vDmaKV)}")
            a(f"v_lshrrev_b32 v14, 8, {vr(vDmaKV)}")
            a(f"v_lshl_add_u32 v15, v14, 10, v15")
        a(f"buffer_load_dwordx4 v15, {sr(S_WO,4)}, {sr(sA)} offen lds")
    a(f"s_lshl_b32 {sr(sVg)}, {sr(sW)}, 12")
    a(f"s_add_u32 {sr(sVl)}, {sr(sVg)}, {VBASE}")
    a(f"s_mul_i32 {sr(sKl)}, {sr(sW)}, {4*KPS}")
    for g in (2, 3):
        a(f"s_add_u32 m0, {sr(sVl)}, {g*VSLOT}")
        a(f"s_add_u32 {sr(sA)}, {sr(sVg)}, {g*16384}")
        for p in range(4):
            a(f"buffer_load_dwordx4 {vr(vDmaKV)}, {sr(S_V,4)}, {sr(sA)} offen offset:{p*1024}{ntkv} lds")
    a(f"s_add_u32 {sr(sA)}, {sr(sVg)}, {4*16384}")
    for p in range(4):
        a(f"s_add_u32 m0, {sr(sKl)}, {KBASE + p*16}")
        a("s_nop 0")
        a(f"buffer_load_dwordx4 {vr(vDmaKV)}, {sr(S_K,4)}, {sr(sA)} offen offset:{p*1024}{ntkv} lds")

    def qk(j):
        out = []
        for ks in range(8):
            d = vr(SB + 16 * j, 16)
            c = vr(CI + 16 * j, 16) if ks == 0 else d
            out.append(f"{MFMA} {d}, {ar(KF+4*ks,4)}, {ar(QF+(j*8+ks)*4,4)}, {c}")
        return out

    def oacc(j, acc):
        if acc < 2:
            return vr(OK + (j * 2 + acc) * 16, 16)
        return ar(OS + (j * 2 + acc - 2) * 16, 16)

    def vf(kj, acc):
        return VF + (kj * 4 + acc) * 4

    def pv(j):
        out = []
        for kj in range(2):
            for acc in range(4):
                d = oacc(j, acc)
                out.append(f"{MFMA} {d}, {ar(vf(kj,acc),4)}, {vr(PB+8*j+4*kj,4)}, {d}")
        return out

    def maxchain(j):
        s = SB + 16 * j
        out = [f"v_max3_f32 {vr(vMx)}, {vr(s)}, {vr(s+1)}, {vr(s+2)}"]
        for r in range(3, 15, 2):
            out.append(f"v_max3_f32 {vr(vMx)}, {vr(vMx)}, {vr(s+r)}, {vr(s+r+1)}")
        out.append(f"v_max_f32 {vr(vMx)}, {vr(vMx)}, {vr(s+15)}")
        return out

    def check(j, tag):
        return [f"v_cmp_lt_f32 vcc, {sr(sT)}, {vr(vMx)}",
                f"s_cbranch_vccnz L_rare{j}_{tag}",
                f"L_back{j}_{tag}:"]

    def emit_list(lst):
        for x in lst:
            if x.endswith(":"):
                a.label(x[:-1])
            else:
                a(x)

    rare_sites = []

    a(f"s_mov_b32 {sr(sT)}, 0xff7fffff")
    a(f"s_mov_b32 {sr(sFloor)}, 0xff7fffff")
    a(f"s_mov_b32 {sr(sFirst)}, 1")
    a(f"s_mov_b32 {sr(sI)}, 0")
    stamp()
    a.ext(qk(0))
    a("s_nop 15")
    a.ext(maxchain(0))
    emit_list(check(0, "p"))
    rare_sites.append((0, "p"))
    a(f"s_add_u32 {sr(sVg)}, {sr(sVg)}, {4*16384}")
    a(f"s_mov_b32 {sr(sRV)}, 0")
    a(f"s_mov_b32 {sr(sRK)}, {KSLOT}")
    a(".p2align 6")
    a.label("L_loop")

    def softmax_fill(j, fill, base):
        s = SB + 16 * j
        for g in range(16):
            lst = fill.setdefault(base + g, [])
            lst.append(f"v_exp_f32 {vr(s+g)}, {vr(s+g)}")
            if g >= 1:
                lst.append(f"v_add_f32 {vr(vLs+j)}, {vr(vLs+j)}, {vr(s+g-1)}")
            if g >= 2 and g % 2 == 0:
                lst.append(f"v_cvt_pk_bf16_f32 {vr(PB+8*j+(g-2)//2)}, {vr(s+g-2)}, {vr(s+g-1)}")
        return [f"v_add_f32 {vr(vLs+j)}, {vr(vLs+j)}, {vr(s+15)}",
                f"v_cvt_pk_bf16_f32 {vr(PB+8*j+7)}, {vr(s+14)}, {vr(s+15)}"]

    mf = []
    fill = {}
    for j in range(3):
        jn = (j + 1) % 3
        jp = (j + 2) % 3
        base = 16 * j
        mf += qk(jn) + pv(jp)
        tail = softmax_fill(j, fill, base)
        mc = maxchain(jn)
        for i, x in enumerate(mc):
            fill.setdefault(base + 11 + i // 2, []).append(x)
        fill.setdefault(base + 15, []).extend(tail + check(jn, "l"))
        rare_sites.append((jn, "l"))
    pre = [f"v_add_u32 {vr(vVA)}, {sr(sRV)}, {vr(vVAl)}",
           f"v_add_u32 {vr(vVB)}, {sr(sRV)}, {vr(vVBl)}",
           f"v_add_u32 {vr(vKa)}, {sr(sRK)}, {vr(vKlane)}"]
    fill[0] = pre + fill[0]
    for kj in range(2):
        for acc in range(4):
            g = 8 + kj * 4 + acc
            areg = vVA if acc < 2 else vVB
            rd = [f"ds_read_b64_tr_b16 {ar(vf(kj,acc)+2*i,2)}, {vr(areg)} offset:{(4*kj+2*i)*1024 + (acc&1)*256}" for i in range(2)]
            fill[g] = rd + fill[g]
    for ks in range(8):
        g = 16 + ks
        fill[g] = [f"ds_read_b128 {ar(KF+4*ks,4)}, {vr(vKa)} offset:{KBASE + (ks>>1)*256 + (ks&1)*32}"] + fill[g]
    fill[23].append("s_waitcnt lgkmcnt(8)")
    fill[31].extend(["s_waitcnt vmcnt(16) lgkmcnt(0)", "s_barrier",
                     f"s_mov_b32 {sr(sT)}, 0x41000000",
                     f"s_mov_b32 {sr(sFloor)}, 0",
                     f"s_mov_b32 {sr(sFirst)}, 0"])
    fill[29] = [f"s_cmp_lt_u32 {sr(sI)}, 12",
                f"s_cselect_b32 {sr(S_V+2)}, 0x40000, 0"] + fill[29]
    fill[30] = [f"s_cmp_lt_u32 {sr(sI)}, 11",
                f"s_cselect_b32 {sr(S_K+2)}, 0x40000, 0"] + fill[30]
    dm = []
    dm.append([f"s_add_u32 m0, {sr(sVl)}, {sr(sRV)}",
               f"s_add_u32 {sr(sKg)}, {sr(sVg)}, 16384",
               f"buffer_load_dwordx4 {vr(vDmaKV)}, {sr(S_V,4)}, {sr(sVg)} offen{ntkv} lds"])
    for p in range(1, 4):
        dm.append([f"buffer_load_dwordx4 {vr(vDmaKV)}, {sr(S_V,4)}, {sr(sVg)} offen offset:{p*1024}{ntkv} lds"])
    for p in range(4):
        m = f"s_add_u32 m0, {sr(sKl)}, {sr(sRK)}" if p == 0 else "s_add_u32 m0, m0, 16"
        dm.append([m, "s_nop 0",
                   f"buffer_load_dwordx4 {vr(vDmaKV)}, {sr(S_K,4)}, {sr(sKg)} offen offset:{p*1024}{ntkv} lds"])
    for i, it in enumerate(dm):
        fill[32 + i] = it + fill[32 + i]
    fill[41] = [f"s_add_u32 {sr(sVg)}, {sr(sVg)}, 16384",
                f"s_add_u32 {sr(sRV)}, {sr(sRV)}, {VSLOT}",
                f"s_and_b32 {sr(sRV)}, {sr(sRV)}, {4*VSLOT-1}",
                f"s_add_u32 {sr(sRK)}, {sr(sRK)}, {KSLOT}"] + fill[41]
    fill[42] = [f"s_cmp_eq_u32 {sr(sRK)}, {4*KSLOT}",
                f"s_cselect_b32 {sr(sRK)}, 0, {sr(sRK)}",
                f"s_add_u32 {sr(sI)}, {sr(sI)}, 1"] + fill[42]
    fill[43] = [f"s_cmp_eq_u32 {sr(sI)}, 16",
                f"s_cselect_b32 {sr(sT)}, 0x7f800000, {sr(sT)}"] + fill[43]
    emit_list(interleave(mf, fill))
    a(f"s_cmp_lt_u32 {sr(sI)}, 16")
    a("s_cbranch_scc1 L_loop")
    a.ext(pv(2))
    stamp()
    a("s_waitcnt vmcnt(0)")
    t0 = SB
    for nt in range(4):
        for i in range(2):
            a(f"ds_read_b64_tr_b16 {vr(t0+nt*4+2*i,2)}, {vr(vWo)} offset:{i*1024 + nt*256}")
    ml = PB
    for j in range(3):
        a(f"v_mov_b32 {vr(ml+4+j)}, {vr(vLs+j)}")
        a(f"v_sub_f32 {vr(ml+j)}, 0, {vr(CI+16*j)}")
    a("s_nop 1")
    for j in range(3):
        a(f"v_permlane32_swap_b32 {vr(ml+4+j)}, {vr(vLs+j)}")
    a("s_nop 1")
    for j in range(3):
        a(f"v_add_f32 {vr(ml+4+j)}, {vr(ml+4+j)}, {vr(vLs+j)}")
    a(f"s_mul_i32 {sr(sA)}, {sr(sW)}, 24576")
    a(f"v_add_u32 v15, {sr(sA)}, {vr(vL16)}")
    a(f"s_xor_b32 {sr(sBt)}, {sr(sW)}, 1")
    a(f"s_mul_i32 {sr(sA)}, {sr(sBt)}, 24576")
    a(f"v_add_u32 v14, {sr(sA)}, {vr(vL16)}")
    a(f"s_lshl_b32 {sr(sA)}, {sr(sW)}, 11")
    a(f"s_add_u32 {sr(sA)}, {sr(sA)}, {EX_ML}")
    a(f"v_add_u32 v13, {sr(sA)}, {vr(vL16)}")
    a(f"s_lshl_b32 {sr(sA)}, {sr(sBt)}, 11")
    a(f"s_add_u32 {sr(sA)}, {sr(sA)}, {EX_ML}")
    a(f"v_add_u32 v12, {sr(sA)}, {vr(vL16)}")
    a("s_barrier")
    a(f"ds_write_b128 v13, {vr(ml,4)}")
    a(f"ds_write_b128 v13, {vr(ml+4,4)} offset:1024")
    for idx in range(24):
        a(f"ds_write_b128 v15, {ar(OS+4*idx,4)} offset:{idx*1024}")
    a(f"s_lshl_b32 {sr(sA)}, {sr(sW)}, 20")
    a(f"s_lshl_b32 {sr(sBt)}, s2, 10")
    a(f"s_add_u32 {sr(sA)}, {sr(sA)}, {sr(sBt)}")
    a(f"s_add_u32 {sr(sA)}, {sr(sA)}, {WS_WOT}")
    a("s_waitcnt lgkmcnt(0)")
    for nt in range(4):
        a(f"buffer_store_dwordx4 {vr(t0+nt*4,4)}, {vr(vL16)}, {sr(S_WS,4)}, {sr(sA)} offen")
        if nt < 3:
            a(f"s_add_u32 {sr(sA)}, {sr(sA)}, 262144")
    a("s_barrier")
    pm = PB + 8
    a(f"ds_read_b128 {vr(pm,4)}, v12")
    a(f"ds_read_b128 {vr(pm+4,4)}, v12 offset:1024")
    RB1 = CI
    RB2 = 208 + 0
    def rb(idx):
        if idx < 12:
            return CI + 4 * idx
        if idx < 20:
            return SB + 16 + 4 * (idx - 12)
        return 236 + 4 * (idx - 20)
    for idx in range(13):
        a(f"ds_read_b128 {vr(rb(idx),4)}, v14 offset:{idx*1024}")
    a("s_waitcnt lgkmcnt(13)")
    g0 = PB + 16
    for j in range(3):
        a(f"v_max_f32 v15, {vr(ml+j)}, {vr(pm+j)}")
        a(f"v_sub_f32 {vr(g0+j)}, {vr(ml+j)}, v15")
        a(f"v_sub_f32 {vr(g0+3+j)}, {vr(pm+j)}, v15")
        a(f"v_exp_f32 {vr(g0+j)}, {vr(g0+j)}")
        a(f"v_exp_f32 {vr(g0+3+j)}, {vr(g0+3+j)}")
        a("s_nop 0")
        a(f"v_mul_f32 v15, {vr(g0+j)}, {vr(ml+4+j)}")
        a(f"v_fma_f32 v15, {vr(g0+3+j)}, {vr(pm+4+j)}, v15")
        a(f"v_rcp_f32 v15, v15")
        a("s_nop 0")
        a(f"v_mul_f32 {vr(g0+j)}, {vr(g0+j)}, v15")
        a(f"v_mul_f32 {vr(g0+3+j)}, {vr(g0+3+j)}, v15")
    for idx in range(13, 24):
        a(f"ds_read_b128 {vr(rb(idx),4)}, v14 offset:{idx*1024}")
    a(f"s_lshl_b32 {sr(sA)}, {sr(sB)}, 1")
    a(f"s_add_u32 {sr(sA)}, {sr(sA)}, {sr(sQH)}")
    a(f"s_lshl_b32 {sr(sA)}, {sr(sA)}, 8")
    a(f"s_lshl_b32 {sr(sBt)}, {sr(sH)}, 3")
    a(f"s_add_u32 {sr(sA)}, {sr(sA)}, {sr(sBt)}")
    a(f"s_lshl_b32 {sr(sBt)}, {sr(sKH)}, 2")
    a(f"s_add_u32 {sr(sA)}, {sr(sA)}, {sr(sBt)}")
    a(f"s_mul_i32 {sr(sA)}, {sr(sA)}, 3072")
    for j in range(3):
        for acc in range(2):
            o = OK + (j * 2 + acc) * 16
            for half in range(2):
                idx0 = (j * 2 + acc) * 4 + half * 2
                a(f"s_waitcnt lgkmcnt({min(15, 22 - idx0)})")
                for e in range(8):
                    r = o + half * 8 + e
                    rr = rb(idx0 + e // 4) + (e & 3)
                    a(f"v_mul_f32 {vr(r)}, {vr(g0+j)}, {vr(r)}")
                    a(f"v_fmac_f32 {vr(r)}, {vr(g0+3+j)}, {vr(rr)}")
                t = o + half * 8
                for e in range(4):
                    a(f"v_cvt_pk_bf16_f32 {vr(t+e)}, {vr(t+2*e)}, {vr(t+2*e+1)}")
                off = ((2 * acc + half) * 3 + j) * 1024
                a(f"s_add_u32 {sr(sBt)}, {sr(sA)}, {off + WS_O}")
                a(f"buffer_store_dwordx4 {vr(t,4)}, {vr(vL16)}, {sr(S_WS,4)}, {sr(sBt)} offen")
    stamp()
    if diag:
        a("s_waitcnt vmcnt(0)")
        stamp()
        a(f"s_memrealtime {sr(sSt + 2*nstamp[0], 2)}")
        a("s_waitcnt lgkmcnt(0)")
        n = nstamp[0]
        a("v_mov_b32 v20, 0")
        for i in range(2 * n + 4):
            a(f"v_writelane_b32 v20, s{58+i}, {i}")
        a(f"s_getreg_b32 {sr(sA)}, hwreg(HW_REG_XCC_ID)")
        a(f"v_writelane_b32 v20, {sr(sA)}, 63")
        a(f"s_lshl_b32 {sr(sA)}, s2, 2")
        a(f"s_add_u32 {sr(sA)}, {sr(sA)}, {sr(sW)}")
        a(f"s_lshl_b32 {sr(sA)}, {sr(sA)}, 8")
        a(f"s_add_u32 {sr(sA)}, {sr(sA)}, {WS_DIAG}")
        a(f"v_lshlrev_b32 v21, 2, {vr(vL)}")
        a(f"buffer_store_dword v20, v21, {sr(S_WS,4)}, {sr(sA)} offen")
    a.label("L_attn_end")
    a("s_endpgm")
    for j, tag in rare_sites:
        a.label(f"L_rare{j}_{tag}")
        a(f"v_mov_b32 {vr(vT0)}, {vr(vMx)}")
        a("s_nop 1")
        a(f"v_permlane32_swap_b32 {vr(vT0)}, {vr(vMx)}")
        a("s_nop 1")
        a(f"v_max3_f32 {vr(vMx)}, {vr(vMx)}, {vr(vT0)}, {sr(sFloor)}")
        for r in range(16):
            a(f"v_sub_f32 {vr(SB+16*j+r)}, {vr(SB+16*j+r)}, {vr(vMx)}")
        a(f"v_sub_f32 {vr(CI+16*j)}, {vr(CI+16*j)}, {vr(vMx)}")
        for r in range(1, 16):
            a(f"v_mov_b32 {vr(CI+16*j+r)}, {vr(CI+16*j)}")
        a(f"s_cmp_eq_u32 {sr(sFirst)}, 1")
        a(f"s_cbranch_scc1 L_back{j}_{tag}")
        a(f"v_sub_f32 {vr(vT0)}, 0, {vr(vMx)}")
        a(f"v_exp_f32 {vr(vT0)}, {vr(vT0)}")
        a("s_nop 0")
        a(f"v_mul_f32 {vr(vLs+j)}, {vr(vLs+j)}, {vr(vT0)}")
        for r in range(32):
            a(f"v_mul_f32 {vr(OK+32*j+r)}, {vr(OK+32*j+r)}, {vr(vT0)}")
        for r in range(32):
            a(f"v_accvgpr_read_b32 {vr(vMx)}, {ar(OS+32*j+r)}")
            a(f"v_mul_f32 {vr(vMx)}, {vr(vMx)}, {vr(vT0)}")
            a(f"v_accvgpr_write_b32 {ar(OS+32*j+r)}, {vr(vMx)}")
        a("s_nop 1")
        a(f"s_branch L_back{j}_{tag}")


def gen_oproj(a, opt):
    D = opt.get("oD", 8)
    S_O, S_W, S_OUT = 8, 12, 16
    sW, sMT, sNT, sA, sBt, sOo, sWo_, sI = 20, 21, 22, 23, 24, 25, 26, 27
    vL, vL16 = 1, 2
    ACC = 16
    a.label("oproj_kernel")
    a("s_cmp_ge_u32 s2, 256")
    a("s_cbranch_scc1 L_oproj_end")
    a("s_load_dwordx2 s[4:5], s[0:1], 40")
    a("s_load_dwordx2 s[6:7], s[0:1], 56")
    a("v_lshrrev_b32 v3, 6, v0")
    a(f"v_and_b32 {vr(vL)}, 63, v0")
    a(f"v_lshlrev_b32 {vr(vL16)}, 4, {vr(vL)}")
    a(f"v_readfirstlane_b32 {sr(sW)}, v3")
    a(f"s_bfe_u32 {sr(sA)}, s2, 0x20001")
    a(f"s_lshl_b32 {sr(sA)}, {sr(sA)}, 2")
    a(f"s_bfe_u32 {sr(sBt)}, s2, 0x20003")
    a(f"s_add_u32 {sr(sMT)}, {sr(sA)}, {sr(sBt)}")
    a(f"s_and_b32 {sr(sA)}, s2, 1")
    a(f"s_lshl_b32 {sr(sA)}, {sr(sA)}, 3")
    a(f"s_lshr_b32 {sr(sBt)}, s2, 5")
    a(f"s_add_u32 {sr(sNT)}, {sr(sA)}, {sr(sBt)}")
    a(f"s_mul_i32 {sr(sOo)}, {sr(sW)}, {64*3072}")
    a(f"s_lshl_b32 {sr(sWo_)}, {sr(sW)}, 16")
    a("s_waitcnt lgkmcnt(0)")
    a(f"s_mul_i32 {sr(sA)}, {sr(sMT)}, {256*3072}")
    a(f"s_add_u32 {sr(S_O)}, s6, {sr(sA)}")
    a(f"s_addc_u32 {sr(S_O+1)}, s7, 0")
    a(f"s_mov_b32 {sr(S_O+2)}, {256*3072}")
    a(f"s_mov_b32 {sr(S_O+3)}, 0x20000")
    a(f"s_lshl_b32 {sr(sA)}, {sr(sNT)}, 18")
    a(f"s_add_u32 {sr(sA)}, {sr(sA)}, {WS_WOT}")
    a(f"s_add_u32 {sr(S_W)}, s6, {sr(sA)}")
    a(f"s_addc_u32 {sr(S_W+1)}, s7, 0")
    a(f"s_mov_b32 {sr(S_W+2)}, 262144")
    a(f"s_mov_b32 {sr(S_W+3)}, 0x20000")

    def loads(d):
        b = 16 * d
        return [f"buffer_load_dwordx4 {ar(b,4)}, {vr(vL16)}, {sr(S_W,4)}, {sr(sWo_)} offen",
                f"buffer_load_dwordx4 {ar(b+4,4)}, {vr(vL16)}, {sr(S_O,4)}, {sr(sOo)} offen",
                f"buffer_load_dwordx4 {ar(b+8,4)}, {vr(vL16)}, {sr(S_O,4)}, {sr(sOo)} offen offset:1024",
                f"buffer_load_dwordx4 {ar(b+12,4)}, {vr(vL16)}, {sr(S_O,4)}, {sr(sOo)} offen offset:2048",
                f"s_add_u32 {sr(sWo_)}, {sr(sWo_)}, 1024",
                f"s_add_u32 {sr(sOo)}, {sr(sOo)}, 3072"]

    def mf(d):
        b = 16 * d
        return [f"{MFMA} {vr(ACC+16*q,16)}, {ar(b,4)}, {ar(b+4+4*q,4)}, {vr(ACC+16*q,16)}" for q in range(3)]

    for d in range(D):
        a.ext(loads(d))
    a(f"s_mov_b32 {sr(S_OUT)}, s4")
    a(f"s_mov_b32 {sr(S_OUT+1)}, s5")
    a(f"s_mov_b32 {sr(S_OUT+2)}, {1536*1024}")
    a(f"s_mov_b32 {sr(S_OUT+3)}, 0x20000")
    for r in range(48):
        a(f"v_mov_b32 {vr(ACC+r)}, 0")
    a(f"s_mov_b32 {sr(sI)}, {64//D - 1}")
    a.label("L_oloop")
    for d in range(D):
        a(f"s_waitcnt vmcnt({4*(D-1)})")
        a.ext(mf(d))
        a.ext(loads(d))
    a(f"s_sub_u32 {sr(sI)}, {sr(sI)}, 1")
    a(f"s_cmp_lg_u32 {sr(sI)}, 0")
    a("s_cbranch_scc1 L_oloop")
    for d in range(D):
        a(f"s_waitcnt vmcnt({4*(D-1-d)})")
        a.ext(mf(d))
    a(f"s_mul_i32 {sr(sA)}, {sr(sW)}, 12288")
    a(f"v_add_u32 v3, {sr(sA)}, {vr(vL16)}")
    a(f"s_mul_i32 {sr(sA)}, {sr(sW)}, 3072")
    a(f"v_add_u32 v4, {sr(sA)}, {vr(vL16)}")
    a(f"v_and_b32 v5, 31, {vr(vL)}")
    a(f"v_lshlrev_b32 v5, 10, v5")
    a(f"v_lshrrev_b32 v6, 5, {vr(vL)}")
    a(f"v_lshl_add_u32 v5, v6, 4, v5")
    a("s_nop 7")
    for idx in range(12):
        a(f"ds_write_b128 v3, {vr(ACC+4*idx,4)} offset:{idx*1024}")
    a("s_waitcnt lgkmcnt(0)")
    a("s_barrier")
    R = 64
    for i in range(3):
        for w in range(4):
            a(f"ds_read_b128 {vr(R+(i*4+w)*4,4)}, v4 offset:{w*12288 + i*1024}")
    a(f"s_mul_i32 {sr(sOo)}, {sr(sMT)}, {96*1024}")
    a(f"s_lshl_b32 {sr(sA)}, {sr(sNT)}, 6")
    a(f"s_add_u32 {sr(sOo)}, {sr(sOo)}, {sr(sA)}")
    a(f"s_mul_i32 {sr(sI)}, {sr(sW)}, 3")
    for i in range(3):
        a(f"s_waitcnt lgkmcnt({8-4*i})")
        b = R + i * 16
        for e in range(4):
            a(f"v_add_f32 {vr(b+e)}, {vr(b+e)}, {vr(b+4+e)}")
            a(f"v_add_f32 {vr(b+8+e)}, {vr(b+8+e)}, {vr(b+12+e)}")
        for e in range(4):
            a(f"v_add_f32 {vr(b+e)}, {vr(b+e)}, {vr(b+8+e)}")
        a(f"v_cvt_pk_bf16_f32 {vr(b)}, {vr(b)}, {vr(b+1)}")
        a(f"v_cvt_pk_bf16_f32 {vr(b+1)}, {vr(b+2)}, {vr(b+3)}")
        a(f"s_lshr_b32 {sr(sA)}, {sr(sI)}, 2")
        a(f"s_lshl_b32 {sr(sA)}, {sr(sA)}, 15")
        a(f"s_add_u32 {sr(sA)}, {sr(sA)}, {sr(sOo)}")
        a(f"s_and_b32 {sr(sBt)}, {sr(sI)}, 2")
        a(f"s_lshl_b32 {sr(sBt)}, {sr(sBt)}, 4")
        a(f"s_add_u32 {sr(sA)}, {sr(sA)}, {sr(sBt)}")
        a(f"s_and_b32 {sr(sBt)}, {sr(sI)}, 1")
        a(f"s_lshl_b32 {sr(sBt)}, {sr(sBt)}, 3")
        a(f"s_add_u32 {sr(sA)}, {sr(sA)}, {sr(sBt)}")
        a(f"buffer_store_dwordx2 {vr(b,2)}, v5, {sr(S_OUT,4)}, {sr(sA)} offen")
        a(f"s_add_u32 {sr(sI)}, {sr(sI)}, 1")
    a.label("L_oproj_end")
    a("s_endpgm")


def kd(name, vgpr, accum, sgpr=102):
    return f""".p2align 6
.amdhsa_kernel {name}
  .amdhsa_next_free_vgpr {vgpr}
  .amdhsa_next_free_sgpr {sgpr}
  .amdhsa_accum_offset {accum}
  .amdhsa_group_segment_fixed_size 0
  .amdhsa_kernarg_size 64
  .amdhsa_user_sgpr_count 2
  .amdhsa_user_sgpr_kernarg_segment_ptr 1
  .amdhsa_system_sgpr_workgroup_id_x 1
  .amdhsa_float_denorm_mode_32 3
.end_amdhsa_kernel
"""


def generate(opt):
    hdr = f"""; GQA block (q-proj + attention + out-proj), generated by work/gen.py
; @launch kernel=attn_kernel grid=(256,1,1) block=(256,1,1) lds={LDS1}
; @launch kernel=oproj_kernel grid=(256,1,1) block=(256,1,1) lds=49152
.amdgcn_target "amdgcn-amd-amdhsa--gfx950"
.text
"""
    out = hdr
    a = A()
    gen_attn(a, opt)
    out += ".globl attn_kernel\n.p2align 8\n.type attn_kernel,@function\n" + a.text()
    a = A()
    gen_oproj(a, opt)
    out += ".globl oproj_kernel\n.p2align 8\n.type oproj_kernel,@function\n" + a.text()
    out += '.section .rodata,"a"\n'
    out += kd("attn_kernel", 512, 256)
    out += kd("oproj_kernel", 128 + 16 * opt.get("oD", 8), 128)
    return out


if __name__ == "__main__":
    opt = {}
    path = f"cdna_kernels/{NAME}.s"
    for arg in sys.argv[1:]:
        if arg.startswith("-o="):
            path = arg[3:]
        elif "=" in arg:
            k, v = arg.split("=")
            opt[k] = int(v)
        else:
            opt[arg] = True
    open(path, "w").write(generate(opt))
    print("wrote", path)
```

```python
import sys
import math
import struct

NAME = "standalone__gqa_block_cached__near_ridge"


def f32bits(x):
    return struct.unpack("<I", struct.pack("<f", x))[0]


class A:
    def __init__(self):
        self.l = []

    def __call__(self, s):
        self.l.append("    " + s)

    def label(self, s):
        self.l.append(s + ":")

    def c(self, s):
        self.l.append("    ; " + s)

    def ext(self, items):
        for s in items:
            self(s)

    def text(self):
        return "\n".join(self.l) + "\n"


def vr(b, n=1):
    return f"v{b}" if n == 1 else f"v[{b}:{b+n-1}]"


def ar(b, n=1):
    return f"a{b}" if n == 1 else f"a[{b}:{b+n-1}]"


def sr(b, n=1):
    return f"s{b}" if n == 1 else f"s[{b}:{b+n-1}]"


MFMA = "v_mfma_f32_32x32x16_bf16"

KPS = 1040
KSLOT = 16 * KPS
VSLOT = 16384
KBASE = 0
VBASE = 4 * KSLOT
SPARE = VBASE + 4 * VSLOT
WQ0 = 2 * KSLOT
WQB = 16384
X0 = VBASE + 2 * VSLOT
XB = 24 * KPS
QEX = X0
WOST = SPARE
EX_ML = 98304
LDS1 = 163840

WS_O = 0
WS_WOT = 16 << 20
WS_DIAG = 32 << 20
WS_SIZE = 64 << 20

SCALE = math.log2(math.e) / math.sqrt(128.0)


def interleave(mf, fillers):
    out = []
    for i, m in enumerate(mf):
        out.append(m)
        out.extend(fillers.get(i, []))
    return out


def gen_attn(a, opt):
    diag = opt.get("diag", False)
    S_X, S_WQ, S_K, S_V, S_WO, S_WS = 16, 20, 24, 28, 32, 36
    sW, sQH, sKH, sB, sH = 40, 41, 42, 43, 44
    sT, sFloor, sFirst, sI = 45, 46, 47, 48
    sKg, sVg = 49, 50
    sKl, sVl = 51, 52
    sRK, sRV = 53, 54
    sA, sBt, sC = 55, 56, 57
    sSt = 60
    vL = 1
    vDmaKV, vDmaWq, vDmaX = 2, 3, 4
    vKlane, vVAl, vVBl = 5, 6, 7
    vKa, vVA, vVB = 8, 9, 10
    vLs = 11
    vMx = 14
    vT0 = 15
    OK = 16
    SB = 112
    PB = 160
    CI = 184
    vTmp = 232
    vXl, vWl = 232, 233
    vL16 = 234
    OS = 0
    QF = 96
    KF = 192
    VF = 224

    nstamp = [0]

    def stamp():
        if diag:
            a(f"s_memtime {sr(sSt + 2 * nstamp[0], 2)}")
            nstamp[0] += 1

    a.label("attn_kernel")
    a("s_cmp_ge_u32 s2, 256")
    a("s_cbranch_scc1 L_attn_end")
    a("s_load_dwordx4 s[4:7], s[0:1], 0")
    a("s_load_dwordx4 s[8:11], s[0:1], 16")
    a("s_load_dwordx2 s[12:13], s[0:1], 32")
    a("s_load_dwordx2 s[14:15], s[0:1], 56")
    if diag:
        a(f"s_memrealtime {sr(58, 2)}")
    stamp()
    a(f"v_lshrrev_b32 v15, 6, v0")
    a(f"v_and_b32 {vr(vL)}, 63, v0")
    a(f"s_and_b32 {sr(sA)}, s2, 7")
    a(f"v_readfirstlane_b32 {sr(sW)}, v15")
    if opt.get("xcd_batch", False):
        a(f"s_mov_b32 {sr(sB)}, {sr(sA)}")
        a(f"s_lshr_b32 {sr(sH)}, s2, 3")
    else:
        a(f"s_lshl_b32 {sr(sA)}, {sr(sA)}, 2")
        a(f"s_bfe_u32 {sr(sBt)}, s2, 0x20003")
        a(f"s_add_u32 {sr(sH)}, {sr(sA)}, {sr(sBt)}")
        a(f"s_lshr_b32 {sr(sB)}, s2, 5")
    a(f"s_lshr_b32 {sr(sQH)}, {sr(sW)}, 1")
    a(f"s_and_b32 {sr(sKH)}, {sr(sW)}, 1")
    a(f"v_and_b32 v15, 3, {vr(vL)}")
    a(f"v_lshlrev_b32 v15, 4, v15")
    a(f"v_lshrrev_b32 v14, 4, {vr(vL)}")
    a(f"v_lshl_add_u32 v14, v14, 6, v15")
    a(f"v_bfe_u32 v13, {vr(vL)}, 2, 2")
    a(f"v_lshl_add_u32 {vr(vDmaKV)}, v13, 8, v14")
    a(f"v_lshl_add_u32 {vr(vDmaWq)}, v13, 13, v14")
    a(f"v_lshrrev_b32 v12, 5, {vr(vL)}")
    a(f"v_lshl_add_u32 v14, v12, 6, v15")
    a(f"v_bfe_u32 v11, {vr(vL)}, 2, 3")
    a(f"v_lshl_add_u32 {vr(vDmaX)}, v11, 10, v14")
    a("s_waitcnt lgkmcnt(0)")
    a(f"s_mul_i32 {sr(sA)}, {sr(sB)}, 196608")
    a(f"s_add_u32 {sr(S_X)}, s4, {sr(sA)}")
    a(f"s_addc_u32 {sr(S_X+1)}, s5, 0")
    a(f"s_mov_b32 {sr(S_X+2)}, 196608")
    a(f"s_mov_b32 {sr(S_X+3)}, 0x20000")
    a(f"s_lshl_b32 {sr(sA)}, {sr(sH)}, 8")
    a(f"s_add_u32 {sr(S_WQ)}, s10, {sr(sA)}")
    a(f"s_addc_u32 {sr(S_WQ+1)}, s11, 0")
    a(f"s_sub_u32 {sr(S_WQ+2)}, 0x400000, {sr(sA)}")
    a(f"s_mov_b32 {sr(S_WQ+3)}, 0x20000")
    a(f"s_lshl_b32 {sr(sA)}, {sr(sB)}, 5")
    a(f"s_add_u32 {sr(sA)}, {sr(sA)}, {sr(sH)}")
    a(f"s_lshl_b32 {sr(sA)}, {sr(sA)}, 18")
    a(f"s_add_u32 {sr(S_K)}, s6, {sr(sA)}")
    a(f"s_addc_u32 {sr(S_K+1)}, s7, 0")
    a(f"s_mov_b32 {sr(S_K+2)}, 0x40000")
    a(f"s_mov_b32 {sr(S_K+3)}, 0x20000")
    a(f"s_add_u32 {sr(S_V)}, s8, {sr(sA)}")
    a(f"s_addc_u32 {sr(S_V+1)}, s9, 0")
    a(f"s_mov_b32 {sr(S_V+2)}, 0x40000")
    a(f"s_mov_b32 {sr(S_V+3)}, 0x20000")

    ntkv = " nt" if opt.get("nt_kv", False) else ""

    sXg, sXld, sWg, sWld, sPg, sPkl = 90, 91, 92, 93, 94, 95
    a(f"s_mul_i32 {sr(sXg)}, {sr(sW)}, {6*8192}")
    a(f"s_mul_i32 {sr(sXld)}, {sr(sW)}, {6*KPS}")
    a(f"s_mul_i32 {sr(sWg)}, {sr(sW)}, {16*8192}")
    a(f"s_lshl_b32 {sr(sWld)}, {sr(sW)}, 12")
    a(f"s_lshl_b32 {sr(sPg)}, {sr(sW)}, 10")
    a(f"s_mul_i32 {sr(sPkl)}, {sr(sW)}, {KPS}")

    def qgroup(s):
        buf = s & 1
        items = []
        for p in range(4):
            items.append([
                f"s_add_u32 m0, {sr(sWld)}, {WQ0 + buf*WQB + p*1024}",
                f"s_add_u32 {sr(sA)}, {sr(sWg)}, {(64*s + 4*p)*8192}",
                f"buffer_load_dwordx4 {vr(vDmaWq)}, {sr(S_WQ,4)}, {sr(sA)} offen lds"])
        for p in range(6):
            items.append([
                f"s_add_u32 m0, {sr(sXld)}, {X0 + buf*XB + p*KPS}",
                f"s_add_u32 {sr(sA)}, {sr(sXg)}, {p*8192 + s*128}",
                f"buffer_load_dwordx4 {vr(vDmaX)}, {sr(S_X,4)}, {sr(sA)} offen lds"])
        items.append([
            f"s_add_u32 m0, {sr(sPkl)}, {KBASE + 4*s*KPS}",
            f"s_add_u32 {sr(sA)}, {sr(sPg)}, {4*s*1024}",
            f"buffer_load_dwordx4 {vr(vDmaKV)}, {sr(S_K,4)}, {sr(sA)} offen{ntkv} lds"])
        items.append([
            f"s_add_u32 m0, {sr(sPg)}, {VBASE + 4*s*1024}",
            f"s_nop 0",
            f"buffer_load_dwordx4 {vr(vDmaKV)}, {sr(S_V,4)}, {sr(sA)} offen{ntkv} lds"])
        return items

    for s in (0, 1):
        for it in qgroup(s):
            a.ext(it)

    a(f"s_lshl_b32 {sr(sA)}, s2, 14")
    a(f"s_add_u32 {sr(S_WO)}, s12, {sr(sA)}")
    a(f"s_addc_u32 {sr(S_WO+1)}, s13, 0")
    a(f"s_mov_b32 {sr(S_WO+2)}, 16384")
    a(f"s_mov_b32 {sr(S_WO+3)}, 0x20000")
    a(f"s_mov_b32 {sr(S_WS)}, s14")
    a(f"s_mov_b32 {sr(S_WS+1)}, s15")
    a(f"s_mov_b32 {sr(S_WS+2)}, {WS_SIZE}")
    a(f"s_mov_b32 {sr(S_WS+3)}, 0x20000")
    a(f"v_bfe_u32 v11, {vr(vL)}, 2, 3")
    a(f"v_mul_u32_u24 v11, {KPS}, v11")
    a(f"v_and_b32 v14, 3, {vr(vL)}")
    a(f"v_lshl_add_u32 v11, v14, 6, v11")
    a(f"v_lshl_add_u32 v11, v12, 4, v11")
    a(f"s_mul_i32 {sr(sA)}, {sr(sKH)}, {8*KPS}")
    a(f"v_add_u32 {vr(vKlane)}, {sr(sA)}, v11")
    a(f"v_and_b32 v14, 1, {vr(vL)}")
    a(f"v_lshlrev_b32 v14, 4, v14")
    a(f"v_bfe_u32 v15, {vr(vL)}, 1, 1")
    a(f"v_lshl_add_u32 v14, v15, 3, v14")
    a(f"v_bfe_u32 v15, {vr(vL)}, 4, 1")
    a(f"v_lshl_add_u32 v14, v15, 5, v14")
    a(f"v_lshl_add_u32 v14, v13, 6, v14")
    a(f"v_lshl_add_u32 v15, v12, 10, v14")
    a(f"s_mul_i32 {sr(sA)}, {sr(sKH)}, {8192+512}")
    a(f"s_add_u32 {sr(sA)}, {sr(sA)}, {VBASE}")
    a(f"v_add_u32 {vr(vVAl)}, {sr(sA)}, v15")
    a(f"s_mul_i32 {sr(sA)}, {sr(sKH)}, {8192-512}")
    a(f"s_add_u32 {sr(sA)}, {sr(sA)}, {VBASE+512}")
    a(f"v_add_u32 {vr(vVBl)}, {sr(sA)}, v15")
    a(f"v_lshl_add_u32 v15, v12, 11, v14")
    a(f"s_lshl_b32 {sr(sA)}, {sr(sKH)}, 9")
    a(f"v_add_u32 {vr(vWl)}, {sr(sA)}, v15")
    vWo = 235
    a(f"s_add_u32 {sr(sA)}, {sr(sWld)}, {WOST}")
    a(f"v_add_u32 {vr(vWo)}, {sr(sA)}, v15")
    a(f"v_bfe_u32 v11, {vr(vL)}, 3, 2")
    a(f"v_mul_u32_u24 v11, {KPS}, v11")
    a(f"v_and_b32 v14, 7, {vr(vL)}")
    a(f"v_lshl_add_u32 v11, v14, 6, v11")
    a(f"v_lshl_add_u32 v11, v12, 4, v11")
    a(f"s_mul_i32 {sr(sA)}, {sr(sQH)}, {12*KPS}")
    a(f"s_add_u32 {sr(sA)}, {sr(sA)}, {X0}")
    a(f"v_add_u32 {vr(vXl)}, {sr(sA)}, v11")
    a(f"v_lshlrev_b32 {vr(vL16)}, 4, {vr(vL)}")

    def xf(r, qt, ks):
        return 80 * r + (qt * 4 + ks) * 4

    def wf(r, dt, ks):
        return 80 * r + 48 + (dt * 4 + ks) * 4

    def qreads(s):
        r = s & 1
        out = []
        for ks in range(4):
            for dt in range(2):
                for i in range(2):
                    out.append(f"ds_read_b64_tr_b16 {ar(wf(r,dt,ks)+2*i,2)}, {vr(vWl)} offset:{WQ0 + r*WQB + (4*ks+i)*1024 + dt*256}")
            for qt in range(3):
                out.append(f"ds_read_b128 {ar(xf(r,qt,ks),4)}, {vr(vXl)} offset:{r*XB + qt*4*KPS + (ks>>1)*512 + (ks&1)*32}")
        return out

    def qacc(qt, dt):
        return OK + (qt * 2 + dt) * 16

    def qmfmas(s):
        r = s & 1
        out = []
        for ks in range(4):
            for dt in range(2):
                for qt in range(3):
                    acc = vr(qacc(qt, dt), 16)
                    c = "0" if (s == 0 and ks == 0) else acc
                    out.append(f"{MFMA} {acc}, {ar(wf(r,dt,ks),4)}, {ar(xf(r,qt,ks),4)}, {c}")
        return out

    a("s_waitcnt vmcnt(14)")
    a("s_barrier")
    stamp()
    a.ext(qreads(0))
    a("s_waitcnt lgkmcnt(0)")
    a("s_barrier")
    for it in qgroup(2):
        a.ext(it)
    for s in range(8):
        mf = qmfmas(s)
        fill = {}
        pre = []
        if s + 1 < 8:
            n = 2 + (12 if s + 2 < 8 else 0)
            pre = [f"s_waitcnt vmcnt({n})", "s_barrier"]
            rd = qreads(s + 1)
            for i, x in enumerate(rd):
                fill.setdefault(i // 3, []).append(x)
            fill.setdefault(11, []).extend(["s_waitcnt lgkmcnt(0)", "s_barrier"])
            if s + 3 < 8:
                for i, it in enumerate(qgroup(s + 3)):
                    fill.setdefault(12 + i, []).extend(it)
            elif s == 6:
                for i in range(8):
                    fill.setdefault(12 + i, []).extend([
                        f"s_add_u32 m0, {sr(sPkl)}, {KBASE + (32 + 4*i)*KPS}",
                        f"s_add_u32 {sr(sA)}, {sr(sPg)}, {(32 + 4*i)*1024}",
                        f"buffer_load_dwordx4 {vr(vDmaKV)}, {sr(S_K,4)}, {sr(sA)} offen{ntkv} lds"])
        a.ext(pre)
        a.ext(interleave(mf, fill))
    stamp()
    a(f"s_mov_b32 {sr(sA)}, {hex(f32bits(SCALE))}")
    a(f"s_mul_i32 {sr(sBt)}, {sr(sW)}, 12288")
    a(f"s_add_u32 {sr(sBt)}, {sr(sBt)}, {QEX}")
    a(f"v_add_u32 v15, {sr(sBt)}, {vr(vL16)}")
    a(f"s_mul_i32 {sr(sBt)}, {sr(sQH)}, 24576")
    a(f"s_add_u32 {sr(sBt)}, {sr(sBt)}, {QEX}")
    a(f"v_add_u32 v14, {sr(sBt)}, {vr(vL16)}")
    for r in range(48):
        a(f"v_mov_b32 {vr(CI+r)}, 0")
    for r in range(24):
        a(f"v_mov_b32 {vr(PB+r)}, 0")
    for j in range(3):
        a(f"v_mov_b32 {vr(vLs+j)}, 0")
    for dt in range(2):
        for qt in range(3):
            acc = qacc(qt, dt)
            for r in range(16):
                a(f"v_mul_f32 {vr(acc+r)}, {sr(sA)}, {vr(acc+r)}")
            for half in range(2):
                t = SB + (qt * 4 + 2 * dt + half) * 4
                for e in range(4):
                    a(f"v_cvt_pk_bf16_f32 {vr(t+e)}, {vr(acc+8*half+2*e)}, {vr(acc+8*half+2*e+1)}")
                a(f"ds_write_b128 v15, {vr(t,4)} offset:{(qt*4+2*dt+half)*1024}")
    a("s_waitcnt lgkmcnt(0)")
    a("s_barrier")
    for qt in range(3):
        for ks in range(8):
            a(f"ds_read_b128 {ar(QF + (qt*8+ks)*4, 4)}, v14 offset:{(ks>>2)*12288 + (qt*4 + (ks&3))*1024}")
    for ks in range(8):
        a(f"ds_read_b128 {ar(KF+4*ks,4)}, {vr(vKlane)} offset:{KBASE + (ks>>1)*256 + (ks&1)*32}")
    for r in range(96):
        a(f"v_mov_b32 {vr(OK+r)}, 0")
    for r in range(96):
        a(f"v_accvgpr_write_b32 {ar(OS+r)}, 0")
    for r in range(32):
        a(f"v_accvgpr_write_b32 {ar(VF+r)}, 0")
    a("s_waitcnt vmcnt(8) lgkmcnt(0)")
    a("s_barrier")
    for p in range(4):
        a(f"s_add_u32 m0, {sr(sWld)}, {WOST + p*1024}")
        a(f"s_lshl_b32 {sr(sA)}, {sr(sW)}, 8")
        a(f"s_add_u32 {sr(sA)}, {sr(sA)}, {p*4096}")
        if p == 0:
            a(f"v_and_b32 v15, 0xff, {vr(vDmaKV)}")
            a(f"v_lshrrev_b32 v14, 8, {vr(vDmaKV)}")
            a(f"v_lshl_add_u32 v15, v14, 10, v15")
        a(f"buffer_load_dwordx4 v15, {sr(S_WO,4)}, {sr(sA)} offen lds")
    a(f"s_lshl_b32 {sr(sVg)}, {sr(sW)}, 12")
    a(f"s_add_u32 {sr(sVl)}, {sr(sVg)}, {VBASE}")
    a(f"s_mul_i32 {sr(sKl)}, {sr(sW)}, {4*KPS}")
    for g in (2, 3):
        a(f"s_add_u32 m0, {sr(sVl)}, {g*VSLOT}")
        a(f"s_add_u32 {sr(sA)}, {sr(sVg)}, {g*16384}")
        for p in range(4):
            a(f"buffer_load_dwordx4 {vr(vDmaKV)}, {sr(S_V,4)}, {sr(sA)} offen offset:{p*1024}{ntkv} lds")
    a(f"s_add_u32 {sr(sA)}, {sr(sVg)}, {4*16384}")
    for p in range(4):
        a(f"s_add_u32 m0, {sr(sKl)}, {KBASE + p*16}")
        a("s_nop 0")
        a(f"buffer_load_dwordx4 {vr(vDmaKV)}, {sr(S_K,4)}, {sr(sA)} offen offset:{p*1024}{ntkv} lds")

    def qk(j):
        out = []
        for ks in range(8):
            d = vr(SB + 16 * j, 16)
            c = vr(CI + 16 * j, 16) if ks == 0 else d
            out.append(f"{MFMA} {d}, {ar(KF+4*ks,4)}, {ar(QF+(j*8+ks)*4,4)}, {c}")
        return out

    def oacc(j, acc):
        if acc < 2:
            return vr(OK + (j * 2 + acc) * 16, 16)
        return ar(OS + (j * 2 + acc - 2) * 16, 16)

    def vf(kj, acc):
        return VF + (kj * 4 + acc) * 4

    def pv(j):
        out = []
        for kj in range(2):
            for acc in range(4):
                d = oacc(j, acc)
                out.append(f"{MFMA} {d}, {ar(vf(kj,acc),4)}, {vr(PB+8*j+4*kj,4)}, {d}")
        return out

    def maxchain(j):
        s = SB + 16 * j
        out = [f"v_max3_f32 {vr(vMx)}, {vr(s)}, {vr(s+1)}, {vr(s+2)}"]
        for r in range(3, 15, 2):
            out.append(f"v_max3_f32 {vr(vMx)}, {vr(vMx)}, {vr(s+r)}, {vr(s+r+1)}")
        out.append(f"v_max_f32 {vr(vMx)}, {vr(vMx)}, {vr(s+15)}")
        return out

    def check(j, tag):
        return [f"v_cmp_lt_f32 vcc, {sr(sT)}, {vr(vMx)}",
                f"s_cbranch_vccnz L_rare{j}_{tag}",
                f"L_back{j}_{tag}:"]

    def emit_list(lst):
        for x in lst:
            if x.endswith(":"):
                a.label(x[:-1])
            else:
                a(x)

    rare_sites = []

    a(f"s_mov_b32 {sr(sT)}, 0xff7fffff")
    a(f"s_mov_b32 {sr(sFloor)}, 0xff7fffff")
    a(f"s_mov_b32 {sr(sFirst)}, 1")
    a(f"s_mov_b32 {sr(sI)}, 0")
    stamp()
    a.ext(qk(0))
    a("s_nop 15")
    a.ext(maxchain(0))
    emit_list(check(0, "p"))
    rare_sites.append((0, "p"))
    a(f"s_add_u32 {sr(sVg)}, {sr(sVg)}, {4*16384}")
    a(f"s_mov_b32 {sr(sRV)}, 0")
    a(f"s_mov_b32 {sr(sRK)}, {KSLOT}")
    a(".p2align 6")
    a.label("L_loop")

    def softmax_fill(j, fill, base):
        s = SB + 16 * j
        for g in range(16):
            lst = fill.setdefault(base + g, [])
            lst.append(f"v_exp_f32 {vr(s+g)}, {vr(s+g)}")
            if g >= 1:
                lst.append(f"v_add_f32 {vr(vLs+j)}, {vr(vLs+j)}, {vr(s+g-1)}")
            if g >= 2 and g % 2 == 0:
                lst.append(f"v_cvt_pk_bf16_f32 {vr(PB+8*j+(g-2)//2)}, {vr(s+g-2)}, {vr(s+g-1)}")
        return [f"v_add_f32 {vr(vLs+j)}, {vr(vLs+j)}, {vr(s+15)}",
                f"v_cvt_pk_bf16_f32 {vr(PB+8*j+7)}, {vr(s+14)}, {vr(s+15)}"]

    mf = []
    fill = {}
    for j in range(3):
        jn = (j + 1) % 3
        jp = (j + 2) % 3
        base = 16 * j
        mf += qk(jn) + pv(jp)
        tail = softmax_fill(j, fill, base)
        mc = maxchain(jn)
        for i, x in enumerate(mc):
            fill.setdefault(base + 11 + i // 2, []).append(x)
        fill.setdefault(base + 15, []).extend(tail + check(jn, "l"))
        rare_sites.append((jn, "l"))
    pre = [f"v_add_u32 {vr(vVA)}, {sr(sRV)}, {vr(vVAl)}",
           f"v_add_u32 {vr(vVB)}, {sr(sRV)}, {vr(vVBl)}",
           f"v_add_u32 {vr(vKa)}, {sr(sRK)}, {vr(vKlane)}"]
    fill[0] = pre + fill[0]
    for kj in range(2):
        for acc in range(4):
            g = 8 + kj * 4 + acc
            areg = vVA if acc < 2 else vVB
            rd = [f"ds_read_b64_tr_b16 {ar(vf(kj,acc)+2*i,2)}, {vr(areg)} offset:{(4*kj+2*i)*1024 + (acc&1)*256}" for i in range(2)]
            fill[g] = rd + fill[g]
    for ks in range(8):
        g = 16 + ks
        fill[g] = [f"ds_read_b128 {ar(KF+4*ks,4)}, {vr(vKa)} offset:{KBASE + (ks>>1)*256 + (ks&1)*32}"] + fill[g]
    fill[23].append("s_waitcnt lgkmcnt(8)")
    fill[31].extend(["s_waitcnt vmcnt(16) lgkmcnt(0)", "s_barrier",
                     f"s_mov_b32 {sr(sT)}, 0x41000000",
                     f"s_mov_b32 {sr(sFloor)}, 0",
                     f"s_mov_b32 {sr(sFirst)}, 0"])
    fill[29] = [f"s_cmp_lt_u32 {sr(sI)}, {0 if opt.get('nodma') else 12}",
                f"s_cselect_b32 {sr(S_V+2)}, 0x40000, 0"] + fill[29]
    fill[30] = [f"s_cmp_lt_u32 {sr(sI)}, {0 if opt.get('nodma') else 11}",
                f"s_cselect_b32 {sr(S_K+2)}, 0x40000, 0"] + fill[30]
    dm = []
    dm.append([f"s_add_u32 m0, {sr(sVl)}, {sr(sRV)}",
               f"s_add_u32 {sr(sKg)}, {sr(sVg)}, 16384",
               f"buffer_load_dwordx4 {vr(vDmaKV)}, {sr(S_V,4)}, {sr(sVg)} offen{ntkv} lds"])
    for p in range(1, 4):
        dm.append([f"buffer_load_dwordx4 {vr(vDmaKV)}, {sr(S_V,4)}, {sr(sVg)} offen offset:{p*1024}{ntkv} lds"])
    for p in range(4):
        m = f"s_add_u32 m0, {sr(sKl)}, {sr(sRK)}" if p == 0 else "s_add_u32 m0, m0, 16"
        dm.append([m, "s_nop 0",
                   f"buffer_load_dwordx4 {vr(vDmaKV)}, {sr(S_K,4)}, {sr(sKg)} offen offset:{p*1024}{ntkv} lds"])
    for i, it in enumerate(dm):
        fill[32 + i] = it + fill[32 + i]
    fill[41] = [f"s_add_u32 {sr(sVg)}, {sr(sVg)}, 16384",
                f"s_add_u32 {sr(sRV)}, {sr(sRV)}, {VSLOT}",
                f"s_and_b32 {sr(sRV)}, {sr(sRV)}, {4*VSLOT-1}",
                f"s_add_u32 {sr(sRK)}, {sr(sRK)}, {KSLOT}"] + fill[41]
    fill[42] = [f"s_cmp_eq_u32 {sr(sRK)}, {4*KSLOT}",
                f"s_cselect_b32 {sr(sRK)}, 0, {sr(sRK)}",
                f"s_add_u32 {sr(sI)}, {sr(sI)}, 1"] + fill[42]
    fill[43] = [f"s_cmp_eq_u32 {sr(sI)}, 16",
                f"s_cselect_b32 {sr(sT)}, 0x7f800000, {sr(sT)}"] + fill[43]
    body = interleave(mf, fill)
    if opt.get("nocomp"):
        body = [x for x in body if not (x.startswith("v_mfma") or x.startswith("v_exp") or x.startswith("v_add_f32") or x.startswith("v_cvt") or x.startswith("v_max") or x.startswith("ds_read"))]
    if opt.get("nolds"):
        body = [x for x in body if not x.startswith("ds_read")]
    if opt.get("novalu"):
        body = [x for x in body if not (x.startswith("v_exp") or x.startswith("v_add_f32") or x.startswith("v_cvt") or x.startswith("v_max"))]
    emit_list(body)
    a(f"s_cmp_lt_u32 {sr(sI)}, 16")
    a("s_cbranch_scc1 L_loop")
    a.ext(pv(2))
    stamp()
    a("s_waitcnt vmcnt(0)")
    t0 = SB
    for nt in range(4):
        for i in range(2):
            a(f"ds_read_b64_tr_b16 {vr(t0+nt*4+2*i,2)}, {vr(vWo)} offset:{i*1024 + nt*256}")
    ml = PB
    for j in range(3):
        a(f"v_mov_b32 {vr(ml+4+j)}, {vr(vLs+j)}")
        a(f"v_sub_f32 {vr(ml+j)}, 0, {vr(CI+16*j)}")
    a("s_nop 1")
    for j in range(3):
        a(f"v_permlane32_swap_b32 {vr(ml+4+j)}, {vr(vLs+j)}")
    a("s_nop 1")
    for j in range(3):
        a(f"v_add_f32 {vr(ml+4+j)}, {vr(ml+4+j)}, {vr(vLs+j)}")
    a(f"s_mul_i32 {sr(sA)}, {sr(sW)}, 24576")
    a(f"v_add_u32 v15, {sr(sA)}, {vr(vL16)}")
    a(f"s_xor_b32 {sr(sBt)}, {sr(sW)}, 1")
    a(f"s_mul_i32 {sr(sA)}, {sr(sBt)}, 24576")
    a(f"v_add_u32 v14, {sr(sA)}, {vr(vL16)}")
    a(f"s_lshl_b32 {sr(sA)}, {sr(sW)}, 11")
    a(f"s_add_u32 {sr(sA)}, {sr(sA)}, {EX_ML}")
    a(f"v_add_u32 v13, {sr(sA)}, {vr(vL16)}")
    a(f"s_lshl_b32 {sr(sA)}, {sr(sBt)}, 11")
    a(f"s_add_u32 {sr(sA)}, {sr(sA)}, {EX_ML}")
    a(f"v_add_u32 v12, {sr(sA)}, {vr(vL16)}")
    a("s_barrier")
    a(f"ds_write_b128 v13, {vr(ml,4)}")
    a(f"ds_write_b128 v13, {vr(ml+4,4)} offset:1024")
    for idx in range(24):
        a(f"ds_write_b128 v15, {ar(OS+4*idx,4)} offset:{idx*1024}")
    a(f"s_lshl_b32 {sr(sA)}, {sr(sW)}, 20")
    a(f"s_lshl_b32 {sr(sBt)}, s2, 10")
    a(f"s_add_u32 {sr(sA)}, {sr(sA)}, {sr(sBt)}")
    a(f"s_add_u32 {sr(sA)}, {sr(sA)}, {WS_WOT}")
    a("s_waitcnt lgkmcnt(0)")
    for nt in range(4):
        a(f"buffer_store_dwordx4 {vr(t0+nt*4,4)}, {vr(vL16)}, {sr(S_WS,4)}, {sr(sA)} offen")
        if nt < 3:
            a(f"s_add_u32 {sr(sA)}, {sr(sA)}, 262144")
    a("s_barrier")
    pm = PB + 8
    a(f"ds_read_b128 {vr(pm,4)}, v12")
    a(f"ds_read_b128 {vr(pm+4,4)}, v12 offset:1024")
    RB1 = CI
    RB2 = 208 + 0
    def rb(idx):
        if idx < 12:
            return CI + 4 * idx
        if idx < 20:
            return SB + 16 + 4 * (idx - 12)
        return 236 + 4 * (idx - 20)
    for idx in range(13):
        a(f"ds_read_b128 {vr(rb(idx),4)}, v14 offset:{idx*1024}")
    a("s_waitcnt lgkmcnt(13)")
    g0 = PB + 16
    for j in range(3):
        a(f"v_max_f32 v15, {vr(ml+j)}, {vr(pm+j)}")
        a(f"v_sub_f32 {vr(g0+j)}, {vr(ml+j)}, v15")
        a(f"v_sub_f32 {vr(g0+3+j)}, {vr(pm+j)}, v15")
        a(f"v_exp_f32 {vr(g0+j)}, {vr(g0+j)}")
        a(f"v_exp_f32 {vr(g0+3+j)}, {vr(g0+3+j)}")
        a("s_nop 0")
        a(f"v_mul_f32 v15, {vr(g0+j)}, {vr(ml+4+j)}")
        a(f"v_fma_f32 v15, {vr(g0+3+j)}, {vr(pm+4+j)}, v15")
        a(f"v_rcp_f32 v15, v15")
        a("s_nop 0")
        a(f"v_mul_f32 {vr(g0+j)}, {vr(g0+j)}, v15")
        a(f"v_mul_f32 {vr(g0+3+j)}, {vr(g0+3+j)}, v15")
    for idx in range(13, 24):
        a(f"ds_read_b128 {vr(rb(idx),4)}, v14 offset:{idx*1024}")
    a(f"s_lshl_b32 {sr(sA)}, {sr(sB)}, 1")
    a(f"s_add_u32 {sr(sA)}, {sr(sA)}, {sr(sQH)}")
    a(f"s_lshl_b32 {sr(sA)}, {sr(sA)}, 8")
    a(f"s_lshl_b32 {sr(sBt)}, {sr(sH)}, 3")
    a(f"s_add_u32 {sr(sA)}, {sr(sA)}, {sr(sBt)}")
    a(f"s_lshl_b32 {sr(sBt)}, {sr(sKH)}, 2")
    a(f"s_add_u32 {sr(sA)}, {sr(sA)}, {sr(sBt)}")
    a(f"s_mul_i32 {sr(sA)}, {sr(sA)}, 3072")
    for j in range(3):
        for acc in range(2):
            o = OK + (j * 2 + acc) * 16
            for half in range(2):
                idx0 = (j * 2 + acc) * 4 + half * 2
                a(f"s_waitcnt lgkmcnt({min(15, 22 - idx0)})")
                for e in range(8):
                    r = o + half * 8 + e
                    rr = rb(idx0 + e // 4) + (e & 3)
                    a(f"v_mul_f32 {vr(r)}, {vr(g0+j)}, {vr(r)}")
                    a(f"v_fmac_f32 {vr(r)}, {vr(g0+3+j)}, {vr(rr)}")
                t = o + half * 8
                for e in range(4):
                    a(f"v_cvt_pk_bf16_f32 {vr(t+e)}, {vr(t+2*e)}, {vr(t+2*e+1)}")
                off = ((2 * acc + half) * 3 + j) * 1024
                a(f"s_add_u32 {sr(sBt)}, {sr(sA)}, {off + WS_O}")
                a(f"buffer_store_dwordx4 {vr(t,4)}, {vr(vL16)}, {sr(S_WS,4)}, {sr(sBt)} offen")
    stamp()
    if diag:
        a("s_waitcnt vmcnt(0)")
        stamp()
        a(f"s_memrealtime {sr(sSt + 2*nstamp[0], 2)}")
        a("s_waitcnt lgkmcnt(0)")
        n = nstamp[0]
        a("v_mov_b32 v20, 0")
        for i in range(2 * n + 4):
            a(f"v_writelane_b32 v20, s{58+i}, {i}")
        a(f"s_getreg_b32 {sr(sA)}, hwreg(HW_REG_XCC_ID)")
        a(f"v_writelane_b32 v20, {sr(sA)}, 63")
        a(f"s_lshl_b32 {sr(sA)}, s2, 2")
        a(f"s_add_u32 {sr(sA)}, {sr(sA)}, {sr(sW)}")
        a(f"s_lshl_b32 {sr(sA)}, {sr(sA)}, 8")
        a(f"s_add_u32 {sr(sA)}, {sr(sA)}, {WS_DIAG}")
        a(f"v_lshlrev_b32 v21, 2, {vr(vL)}")
        a(f"buffer_store_dword v20, v21, {sr(S_WS,4)}, {sr(sA)} offen")
    a.label("L_attn_end")
    a("s_endpgm")
    for j, tag in rare_sites:
        a.label(f"L_rare{j}_{tag}")
        a(f"v_mov_b32 {vr(vT0)}, {vr(vMx)}")
        a("s_nop 1")
        a(f"v_permlane32_swap_b32 {vr(vT0)}, {vr(vMx)}")
        a("s_nop 1")
        a(f"v_max3_f32 {vr(vMx)}, {vr(vMx)}, {vr(vT0)}, {sr(sFloor)}")
        for r in range(16):
            a(f"v_sub_f32 {vr(SB+16*j+r)}, {vr(SB+16*j+r)}, {vr(vMx)}")
        a(f"v_sub_f32 {vr(CI+16*j)}, {vr(CI+16*j)}, {vr(vMx)}")
        for r in range(1, 16):
            a(f"v_mov_b32 {vr(CI+16*j+r)}, {vr(CI+16*j)}")
        a(f"s_cmp_eq_u32 {sr(sFirst)}, 1")
        a(f"s_cbranch_scc1 L_back{j}_{tag}")
        a(f"v_sub_f32 {vr(vT0)}, 0, {vr(vMx)}")
        a(f"v_exp_f32 {vr(vT0)}, {vr(vT0)}")
        a("s_nop 0")
        a(f"v_mul_f32 {vr(vLs+j)}, {vr(vLs+j)}, {vr(vT0)}")
        for r in range(32):
            a(f"v_mul_f32 {vr(OK+32*j+r)}, {vr(OK+32*j+r)}, {vr(vT0)}")
        for r in range(32):
            a(f"v_accvgpr_read_b32 {vr(vMx)}, {ar(OS+32*j+r)}")
            a(f"v_mul_f32 {vr(vMx)}, {vr(vMx)}, {vr(vT0)}")
            a(f"v_accvgpr_write_b32 {ar(OS+32*j+r)}, {vr(vMx)}")
        a("s_nop 1")
        a(f"s_branch L_back{j}_{tag}")


def gen_oproj(a, opt):
    D = opt.get("oD", 8)
    S_O, S_W, S_OUT = 8, 12, 16
    sW, sMT, sNT, sA, sBt, sOo, sWo_, sI = 20, 21, 22, 23, 24, 25, 26, 27
    vL, vL16 = 1, 2
    ACC = 16
    a.label("oproj_kernel")
    a("s_cmp_ge_u32 s2, 256")
    a("s_cbranch_scc1 L_oproj_end")
    a("s_load_dwordx2 s[4:5], s[0:1], 40")
    a("s_load_dwordx2 s[6:7], s[0:1], 56")
    a("v_lshrrev_b32 v3, 6, v0")
    a(f"v_and_b32 {vr(vL)}, 63, v0")
    a(f"v_lshlrev_b32 {vr(vL16)}, 4, {vr(vL)}")
    a(f"v_readfirstlane_b32 {sr(sW)}, v3")
    a(f"s_bfe_u32 {sr(sA)}, s2, 0x20001")
    a(f"s_lshl_b32 {sr(sA)}, {sr(sA)}, 2")
    a(f"s_bfe_u32 {sr(sBt)}, s2, 0x20003")
    a(f"s_add_u32 {sr(sMT)}, {sr(sA)}, {sr(sBt)}")
    a(f"s_and_b32 {sr(sA)}, s2, 1")
    a(f"s_lshl_b32 {sr(sA)}, {sr(sA)}, 3")
    a(f"s_lshr_b32 {sr(sBt)}, s2, 5")
    a(f"s_add_u32 {sr(sNT)}, {sr(sA)}, {sr(sBt)}")
    a(f"s_mul_i32 {sr(sOo)}, {sr(sW)}, {64*3072}")
    a(f"s_lshl_b32 {sr(sWo_)}, {sr(sW)}, 16")
    a("s_waitcnt lgkmcnt(0)")
    a(f"s_mul_i32 {sr(sA)}, {sr(sMT)}, {256*3072}")
    a(f"s_add_u32 {sr(S_O)}, s6, {sr(sA)}")
    a(f"s_addc_u32 {sr(S_O+1)}, s7, 0")
    a(f"s_mov_b32 {sr(S_O+2)}, {256*3072}")
    a(f"s_mov_b32 {sr(S_O+3)}, 0x20000")
    a(f"s_lshl_b32 {sr(sA)}, {sr(sNT)}, 18")
    a(f"s_add_u32 {sr(sA)}, {sr(sA)}, {WS_WOT}")
    a(f"s_add_u32 {sr(S_W)}, s6, {sr(sA)}")
    a(f"s_addc_u32 {sr(S_W+1)}, s7, 0")
    a(f"s_mov_b32 {sr(S_W+2)}, 262144")
    a(f"s_mov_b32 {sr(S_W+3)}, 0x20000")

    def loads(d):
        b = 16 * d
        return [f"buffer_load_dwordx4 {ar(b,4)}, {vr(vL16)}, {sr(S_W,4)}, {sr(sWo_)} offen",
                f"buffer_load_dwordx4 {ar(b+4,4)}, {vr(vL16)}, {sr(S_O,4)}, {sr(sOo)} offen",
                f"buffer_load_dwordx4 {ar(b+8,4)}, {vr(vL16)}, {sr(S_O,4)}, {sr(sOo)} offen offset:1024",
                f"buffer_load_dwordx4 {ar(b+12,4)}, {vr(vL16)}, {sr(S_O,4)}, {sr(sOo)} offen offset:2048",
                f"s_add_u32 {sr(sWo_)}, {sr(sWo_)}, 1024",
                f"s_add_u32 {sr(sOo)}, {sr(sOo)}, 3072"]

    def mf(d):
        b = 16 * d
        return [f"{MFMA} {vr(ACC+16*q,16)}, {ar(b,4)}, {ar(b+4+4*q,4)}, {vr(ACC+16*q,16)}" for q in range(3)]

    for d in range(D):
        a.ext(loads(d))
    a(f"s_mov_b32 {sr(S_OUT)}, s4")
    a(f"s_mov_b32 {sr(S_OUT+1)}, s5")
    a(f"s_mov_b32 {sr(S_OUT+2)}, {1536*1024}")
    a(f"s_mov_b32 {sr(S_OUT+3)}, 0x20000")
    for r in range(48):
        a(f"v_mov_b32 {vr(ACC+r)}, 0")
    a(f"s_mov_b32 {sr(sI)}, {64//D - 1}")
    a.label("L_oloop")
    for d in range(D):
        a(f"s_waitcnt vmcnt({4*(D-1)})")
        a.ext(mf(d))
        a.ext(loads(d))
    a(f"s_sub_u32 {sr(sI)}, {sr(sI)}, 1")
    a(f"s_cmp_lg_u32 {sr(sI)}, 0")
    a("s_cbranch_scc1 L_oloop")
    for d in range(D):
        a(f"s_waitcnt vmcnt({4*(D-1-d)})")
        a.ext(mf(d))
    a(f"s_mul_i32 {sr(sA)}, {sr(sW)}, 12288")
    a(f"v_add_u32 v3, {sr(sA)}, {vr(vL16)}")
    a(f"s_mul_i32 {sr(sA)}, {sr(sW)}, 3072")
    a(f"v_add_u32 v4, {sr(sA)}, {vr(vL16)}")
    a(f"v_and_b32 v5, 31, {vr(vL)}")
    a(f"v_lshlrev_b32 v5, 10, v5")
    a(f"v_lshrrev_b32 v6, 5, {vr(vL)}")
    a(f"v_lshl_add_u32 v5, v6, 4, v5")
    a("s_nop 7")
    for idx in range(12):
        a(f"ds_write_b128 v3, {vr(ACC+4*idx,4)} offset:{idx*1024}")
    a("s_waitcnt lgkmcnt(0)")
    a("s_barrier")
    R = 64
    for i in range(3):
        for w in range(4):
            a(f"ds_read_b128 {vr(R+(i*4+w)*4,4)}, v4 offset:{w*12288 + i*1024}")
    a(f"s_mul_i32 {sr(sOo)}, {sr(sMT)}, {96*1024}")
    a(f"s_lshl_b32 {sr(sA)}, {sr(sNT)}, 6")
    a(f"s_add_u32 {sr(sOo)}, {sr(sOo)}, {sr(sA)}")
    a(f"s_mul_i32 {sr(sI)}, {sr(sW)}, 3")
    for i in range(3):
        a(f"s_waitcnt lgkmcnt({8-4*i})")
        b = R + i * 16
        for e in range(4):
            a(f"v_add_f32 {vr(b+e)}, {vr(b+e)}, {vr(b+4+e)}")
            a(f"v_add_f32 {vr(b+8+e)}, {vr(b+8+e)}, {vr(b+12+e)}")
        for e in range(4):
            a(f"v_add_f32 {vr(b+e)}, {vr(b+e)}, {vr(b+8+e)}")
        a(f"v_cvt_pk_bf16_f32 {vr(b)}, {vr(b)}, {vr(b+1)}")
        a(f"v_cvt_pk_bf16_f32 {vr(b+1)}, {vr(b+2)}, {vr(b+3)}")
        a(f"s_lshr_b32 {sr(sA)}, {sr(sI)}, 2")
        a(f"s_lshl_b32 {sr(sA)}, {sr(sA)}, 15")
        a(f"s_add_u32 {sr(sA)}, {sr(sA)}, {sr(sOo)}")
        a(f"s_and_b32 {sr(sBt)}, {sr(sI)}, 2")
        a(f"s_lshl_b32 {sr(sBt)}, {sr(sBt)}, 4")
        a(f"s_add_u32 {sr(sA)}, {sr(sA)}, {sr(sBt)}")
        a(f"s_and_b32 {sr(sBt)}, {sr(sI)}, 1")
        a(f"s_lshl_b32 {sr(sBt)}, {sr(sBt)}, 3")
        a(f"s_add_u32 {sr(sA)}, {sr(sA)}, {sr(sBt)}")
        a(f"buffer_store_dwordx2 {vr(b,2)}, v5, {sr(S_OUT,4)}, {sr(sA)} offen")
        a(f"s_add_u32 {sr(sI)}, {sr(sI)}, 1")
    a.label("L_oproj_end")
    a("s_endpgm")


def kd(name, vgpr, accum, sgpr=102):
    return f""".p2align 6
.amdhsa_kernel {name}
  .amdhsa_next_free_vgpr {vgpr}
  .amdhsa_next_free_sgpr {sgpr}
  .amdhsa_accum_offset {accum}
  .amdhsa_group_segment_fixed_size 0
  .amdhsa_kernarg_size 64
  .amdhsa_user_sgpr_count 2
  .amdhsa_user_sgpr_kernarg_segment_ptr 1
  .amdhsa_system_sgpr_workgroup_id_x 1
  .amdhsa_float_denorm_mode_32 3
.end_amdhsa_kernel
"""


def generate(opt):
    hdr = f"""; GQA block (q-proj + attention + out-proj), generated by work/gen.py
; @launch kernel=attn_kernel grid=(256,1,1) block=(256,1,1) lds={LDS1}
; @launch kernel=oproj_kernel grid=(256,1,1) block=(256,1,1) lds=49152
.amdgcn_target "amdgcn-amd-amdhsa--gfx950"
.text
"""
    out = hdr
    a = A()
    gen_attn(a, opt)
    out += ".globl attn_kernel\n.p2align 8\n.type attn_kernel,@function\n" + a.text()
    a = A()
    gen_oproj(a, opt)
    out += ".globl oproj_kernel\n.p2align 8\n.type oproj_kernel,@function\n" + a.text()
    out += '.section .rodata,"a"\n'
    out += kd("attn_kernel", 512, 256)
    out += kd("oproj_kernel", 128 + 16 * opt.get("oD", 8), 128)
    return out


if __name__ == "__main__":
    opt = {}
    path = f"cdna_kernels/{NAME}.s"
    for arg in sys.argv[1:]:
        if arg.startswith("-o="):
            path = arg[3:]
        elif "=" in arg:
            k, v = arg.split("=")
            opt[k] = int(v)
        else:
            opt[arg] = True
    open(path, "w").write(generate(opt))
    print("wrote", path)
```

```python
import sys
import math
import struct

NAME = "standalone__gqa_block_cached__near_ridge"


def f32bits(x):
    return struct.unpack("<I", struct.pack("<f", x))[0]


class A:
    def __init__(self):
        self.l = []

    def __call__(self, s):
        self.l.append("    " + s)

    def label(self, s):
        self.l.append(s + ":")

    def c(self, s):
        self.l.append("    ; " + s)

    def ext(self, items):
        for s in items:
            self(s)

    def text(self):
        return "\n".join(self.l) + "\n"


def vr(b, n=1):
    return f"v{b}" if n == 1 else f"v[{b}:{b+n-1}]"


def ar(b, n=1):
    return f"a{b}" if n == 1 else f"a[{b}:{b+n-1}]"


def sr(b, n=1):
    return f"s{b}" if n == 1 else f"s[{b}:{b+n-1}]"


MFMA = "v_mfma_f32_32x32x16_bf16"

KPS = 1040
KSLOT = 16 * KPS
VSLOT = 16384
KBASE = 0
VBASE = 4 * KSLOT
SPARE = VBASE + 4 * VSLOT
WQ0 = 2 * KSLOT
WQB = 16384
X0 = VBASE + 2 * VSLOT
XB = 24 * KPS
QEX = X0
WOST = SPARE
EX_ML = 98304
LDS1 = 163840

WS_O = 0
WS_WOT = 16 << 20
WS_DIAG = 32 << 20
WS_SIZE = 64 << 20

SCALE = math.log2(math.e) / math.sqrt(128.0)


def interleave(mf, fillers):
    out = []
    for i, m in enumerate(mf):
        out.append(m)
        out.extend(fillers.get(i, []))
    return out


def gen_attn(a, opt):
    diag = opt.get("diag", False)
    S_X, S_WQ, S_K, S_V, S_WO, S_WS = 16, 20, 24, 28, 32, 36
    sW, sQH, sKH, sB, sH = 40, 41, 42, 43, 44
    sT, sFloor, sFirst, sI = 45, 46, 47, 48
    sKg, sVg = 49, 50
    sKl, sVl = 51, 52
    sRK, sRV = 53, 54
    sA, sBt, sC = 55, 56, 57
    sSt = 60
    vL = 1
    vDmaKV, vDmaWq, vDmaX = 2, 3, 4
    vKlane, vVAl, vVBl = 5, 6, 7
    vKa, vVA, vVB = 8, 9, 10
    vLs = 11
    vMx = 14
    vT0 = 15
    OK = 16
    SB = 112
    PB = 160
    CI = 184
    vTmp = 232
    vXl, vWl = 232, 233
    vL16 = 234
    OS = 0
    QF = 96
    KF = 192
    VF = 224

    nstamp = [0]

    def stamp():
        if diag:
            a(f"s_memtime {sr(sSt + 2 * nstamp[0], 2)}")
            nstamp[0] += 1

    a.label("attn_kernel")
    a("s_cmp_ge_u32 s2, 256")
    a("s_cbranch_scc1 L_attn_end")
    a("s_load_dwordx4 s[4:7], s[0:1], 0")
    a("s_load_dwordx4 s[8:11], s[0:1], 16")
    a("s_load_dwordx2 s[12:13], s[0:1], 32")
    a("s_load_dwordx2 s[14:15], s[0:1], 56")
    if diag:
        a(f"s_memrealtime {sr(58, 2)}")
    stamp()
    a(f"v_lshrrev_b32 v15, 6, v0")
    a(f"v_and_b32 {vr(vL)}, 63, v0")
    a(f"s_and_b32 {sr(sA)}, s2, 7")
    a(f"v_readfirstlane_b32 {sr(sW)}, v15")
    if opt.get("xcd_batch", False):
        a(f"s_mov_b32 {sr(sB)}, {sr(sA)}")
        a(f"s_lshr_b32 {sr(sH)}, s2, 3")
    else:
        a(f"s_lshl_b32 {sr(sA)}, {sr(sA)}, 2")
        a(f"s_bfe_u32 {sr(sBt)}, s2, 0x20003")
        a(f"s_add_u32 {sr(sH)}, {sr(sA)}, {sr(sBt)}")
        a(f"s_lshr_b32 {sr(sB)}, s2, 5")
    a(f"s_lshr_b32 {sr(sQH)}, {sr(sW)}, 1")
    a(f"s_and_b32 {sr(sKH)}, {sr(sW)}, 1")
    a(f"v_and_b32 v15, 3, {vr(vL)}")
    a(f"v_lshlrev_b32 v15, 4, v15")
    a(f"v_lshrrev_b32 v14, 4, {vr(vL)}")
    a(f"v_lshl_add_u32 v14, v14, 6, v15")
    a(f"v_bfe_u32 v13, {vr(vL)}, 2, 2")
    a(f"v_lshl_add_u32 {vr(vDmaKV)}, v13, 8, v14")
    a(f"v_lshl_add_u32 {vr(vDmaWq)}, v13, 13, v14")
    a(f"v_lshrrev_b32 v12, 5, {vr(vL)}")
    a(f"v_lshl_add_u32 v14, v12, 6, v15")
    a(f"v_bfe_u32 v11, {vr(vL)}, 2, 3")
    a(f"v_lshl_add_u32 {vr(vDmaX)}, v11, 10, v14")
    a("s_waitcnt lgkmcnt(0)")
    if opt.get("sdiag"): stamp()
    a(f"s_mul_i32 {sr(sA)}, {sr(sB)}, 196608")
    a(f"s_add_u32 {sr(S_X)}, s4, {sr(sA)}")
    a(f"s_addc_u32 {sr(S_X+1)}, s5, 0")
    a(f"s_mov_b32 {sr(S_X+2)}, 196608")
    a(f"s_mov_b32 {sr(S_X+3)}, 0x20000")
    a(f"s_lshl_b32 {sr(sA)}, {sr(sH)}, 8")
    a(f"s_add_u32 {sr(S_WQ)}, s10, {sr(sA)}")
    a(f"s_addc_u32 {sr(S_WQ+1)}, s11, 0")
    a(f"s_sub_u32 {sr(S_WQ+2)}, 0x400000, {sr(sA)}")
    a(f"s_mov_b32 {sr(S_WQ+3)}, 0x20000")
    a(f"s_lshl_b32 {sr(sA)}, {sr(sB)}, 5")
    a(f"s_add_u32 {sr(sA)}, {sr(sA)}, {sr(sH)}")
    a(f"s_lshl_b32 {sr(sA)}, {sr(sA)}, 18")
    a(f"s_add_u32 {sr(S_K)}, s6, {sr(sA)}")
    a(f"s_addc_u32 {sr(S_K+1)}, s7, 0")
    a(f"s_mov_b32 {sr(S_K+2)}, 0x40000")
    a(f"s_mov_b32 {sr(S_K+3)}, 0x20000")
    a(f"s_add_u32 {sr(S_V)}, s8, {sr(sA)}")
    a(f"s_addc_u32 {sr(S_V+1)}, s9, 0")
    a(f"s_mov_b32 {sr(S_V+2)}, 0x40000")
    a(f"s_mov_b32 {sr(S_V+3)}, 0x20000")

    ntkv = " nt" if opt.get("nt_kv", False) else ""
    pst = {0: "", 1: " nt", 2: " sc1", 3: " sc0 sc1", 4: " sc1 nt"}[opt.get("pst", 0)]

    sXg, sXld, sWg, sWld, sPg, sPkl = 90, 91, 92, 93, 94, 95
    a(f"s_mul_i32 {sr(sXg)}, {sr(sW)}, {6*8192}")
    a(f"s_mul_i32 {sr(sXld)}, {sr(sW)}, {6*KPS}")
    a(f"s_mul_i32 {sr(sWg)}, {sr(sW)}, {16*8192}")
    a(f"s_lshl_b32 {sr(sWld)}, {sr(sW)}, 12")
    a(f"s_lshl_b32 {sr(sPg)}, {sr(sW)}, 10")
    a(f"s_mul_i32 {sr(sPkl)}, {sr(sW)}, {KPS}")

    sRot, sXs, sWs = 96, 97, 98
    ntq = " nt" if opt.get("nt_q", False) else ""
    if opt.get("rot", False):
        a(f"s_and_b32 {sr(sRot)}, {sr(sH)}, 3")
        a(f"s_lshl_b32 {sr(sRot)}, {sr(sRot)}, 1")
        a(f"s_add_u32 {sr(sRot)}, {sr(sRot)}, {sr(sB)}")
    else:
        a(f"s_mov_b32 {sr(sRot)}, 0")

    def qgroup(s):
        buf = s & 1
        items = []
        for p in range(4):
            pre = []
            if p == 0:
                pre = [f"s_add_u32 {sr(sXs)}, {sr(sRot)}, {s}",
                       f"s_and_b32 {sr(sXs)}, {sr(sXs)}, 7",
                       f"s_lshl_b32 {sr(sWs)}, {sr(sXs)}, 19",
                       f"s_add_u32 {sr(sWs)}, {sr(sWs)}, {sr(sWg)}",
                       f"s_lshl_b32 {sr(sXs)}, {sr(sXs)}, 7",
                       f"s_add_u32 {sr(sXs)}, {sr(sXs)}, {sr(sXg)}"]
            items.append(pre + [
                f"s_add_u32 m0, {sr(sWld)}, {WQ0 + buf*WQB + p*1024}",
                f"s_add_u32 {sr(sA)}, {sr(sWs)}, {4*p*8192}",
                f"buffer_load_dwordx4 {vr(vDmaWq)}, {sr(S_WQ,4)}, {sr(sA)} offen{ntq} lds"])
        for p in range(6):
            items.append([
                f"s_add_u32 m0, {sr(sXld)}, {X0 + buf*XB + p*KPS}",
                f"s_add_u32 {sr(sA)}, {sr(sXs)}, {p*8192}",
                f"buffer_load_dwordx4 {vr(vDmaX)}, {sr(S_X,4)}, {sr(sA)} offen{ntq} lds"])
        items.append([
            f"s_add_u32 m0, {sr(sPkl)}, {KBASE + 4*s*KPS}",
            f"s_add_u32 {sr(sA)}, {sr(sPg)}, {4*s*1024}",
            f"buffer_load_dwordx4 {vr(vDmaKV)}, {sr(S_K,4)}, {sr(sA)} offen{ntkv} lds"])
        items.append([
            f"s_add_u32 m0, {sr(sPg)}, {VBASE + 4*s*1024}",
            f"s_nop 0",
            f"buffer_load_dwordx4 {vr(vDmaKV)}, {sr(S_V,4)}, {sr(sA)} offen{ntkv} lds"])
        return items

    if opt.get("nokvq"):
        a(f"s_mov_b32 {sr(S_K+2)}, 0")
        a(f"s_mov_b32 {sr(S_V+2)}, 0")
    if opt.get("sdiag"): stamp()
    for s in (0, 1):
        for it in qgroup(s):
            a.ext(it)
        if opt.get("sdiag"): stamp()

    a(f"s_lshl_b32 {sr(sA)}, s2, 14")
    a(f"s_add_u32 {sr(S_WO)}, s12, {sr(sA)}")
    a(f"s_addc_u32 {sr(S_WO+1)}, s13, 0")
    a(f"s_mov_b32 {sr(S_WO+2)}, 16384")
    a(f"s_mov_b32 {sr(S_WO+3)}, 0x20000")
    a(f"s_mov_b32 {sr(S_WS)}, s14")
    a(f"s_mov_b32 {sr(S_WS+1)}, s15")
    a(f"s_mov_b32 {sr(S_WS+2)}, {WS_SIZE}")
    a(f"s_mov_b32 {sr(S_WS+3)}, 0x20000")
    a(f"v_bfe_u32 v11, {vr(vL)}, 2, 3")
    a(f"v_mul_u32_u24 v11, {KPS}, v11")
    a(f"v_and_b32 v14, 3, {vr(vL)}")
    a(f"v_lshl_add_u32 v11, v14, 6, v11")
    a(f"v_lshl_add_u32 v11, v12, 4, v11")
    a(f"s_mul_i32 {sr(sA)}, {sr(sKH)}, {8*KPS}")
    a(f"v_add_u32 {vr(vKlane)}, {sr(sA)}, v11")
    a(f"v_and_b32 v14, 1, {vr(vL)}")
    a(f"v_lshlrev_b32 v14, 4, v14")
    a(f"v_bfe_u32 v15, {vr(vL)}, 1, 1")
    a(f"v_lshl_add_u32 v14, v15, 3, v14")
    a(f"v_bfe_u32 v15, {vr(vL)}, 4, 1")
    a(f"v_lshl_add_u32 v14, v15, 5, v14")
    a(f"v_lshl_add_u32 v14, v13, 6, v14")
    a(f"v_lshl_add_u32 v15, v12, 10, v14")
    a(f"s_mul_i32 {sr(sA)}, {sr(sKH)}, {8192+512}")
    a(f"s_add_u32 {sr(sA)}, {sr(sA)}, {VBASE}")
    a(f"v_add_u32 {vr(vVAl)}, {sr(sA)}, v15")
    a(f"s_mul_i32 {sr(sA)}, {sr(sKH)}, {8192-512}")
    a(f"s_add_u32 {sr(sA)}, {sr(sA)}, {VBASE+512}")
    a(f"v_add_u32 {vr(vVBl)}, {sr(sA)}, v15")
    a(f"v_lshl_add_u32 v15, v12, 11, v14")
    a(f"s_lshl_b32 {sr(sA)}, {sr(sKH)}, 9")
    a(f"v_add_u32 {vr(vWl)}, {sr(sA)}, v15")
    vWo = 235
    a(f"s_add_u32 {sr(sA)}, {sr(sWld)}, {WOST}")
    a(f"v_add_u32 {vr(vWo)}, {sr(sA)}, v15")
    a(f"v_bfe_u32 v11, {vr(vL)}, 3, 2")
    a(f"v_mul_u32_u24 v11, {KPS}, v11")
    a(f"v_and_b32 v14, 7, {vr(vL)}")
    a(f"v_lshl_add_u32 v11, v14, 6, v11")
    a(f"v_lshl_add_u32 v11, v12, 4, v11")
    a(f"s_mul_i32 {sr(sA)}, {sr(sQH)}, {12*KPS}")
    a(f"s_add_u32 {sr(sA)}, {sr(sA)}, {X0}")
    a(f"v_add_u32 {vr(vXl)}, {sr(sA)}, v11")
    a(f"v_lshlrev_b32 {vr(vL16)}, 4, {vr(vL)}")

    def xf(r, qt, ks):
        return 80 * r + (qt * 4 + ks) * 4

    def wf(r, dt, ks):
        return 80 * r + 48 + (dt * 4 + ks) * 4

    def qreads(s):
        r = s & 1
        out = []
        for ks in range(4):
            for dt in range(2):
                for i in range(2):
                    out.append(f"ds_read_b64_tr_b16 {ar(wf(r,dt,ks)+2*i,2)}, {vr(vWl)} offset:{WQ0 + r*WQB + (4*ks+i)*1024 + dt*256}")
            for qt in range(3):
                out.append(f"ds_read_b128 {ar(xf(r,qt,ks),4)}, {vr(vXl)} offset:{r*XB + qt*4*KPS + (ks>>1)*512 + (ks&1)*32}")
        return out

    def qacc(qt, dt):
        return OK + (qt * 2 + dt) * 16

    def qmfmas(s):
        r = s & 1
        out = []
        for ks in range(4):
            for dt in range(2):
                for qt in range(3):
                    acc = vr(qacc(qt, dt), 16)
                    c = "0" if (s == 0 and ks == 0) else acc
                    out.append(f"{MFMA} {acc}, {ar(wf(r,dt,ks),4)}, {ar(xf(r,qt,ks),4)}, {c}")
        return out

    if opt.get("sdiag"): stamp()
    if opt.get("sdiag"):
        a("s_waitcnt vmcnt(23)")
        stamp()
    a("s_waitcnt vmcnt(14)")
    a("s_barrier")
    stamp()
    a.ext(qreads(0))
    a("s_waitcnt lgkmcnt(0)")
    a("s_barrier")
    for it in qgroup(2):
        a.ext(it)
    for s in range(8):
        mf = qmfmas(s)
        fill = {}
        pre = []
        if s + 1 < 8:
            n = 2 + (12 if s + 2 < 8 else 0)
            pre = [f"s_waitcnt vmcnt({n})", "s_barrier"]
            rd = qreads(s + 1)
            for i, x in enumerate(rd):
                fill.setdefault(i // 3, []).append(x)
            fill.setdefault(11, []).extend(["s_waitcnt lgkmcnt(0)", "s_barrier"])
            if s + 3 < 8:
                for i, it in enumerate(qgroup(s + 3)):
                    fill.setdefault(12 + i, []).extend(it)
            elif s == 6:
                for i in range(8):
                    fill.setdefault(12 + i, []).extend([
                        f"s_add_u32 m0, {sr(sPkl)}, {KBASE + (32 + 4*i)*KPS}",
                        f"s_add_u32 {sr(sA)}, {sr(sPg)}, {(32 + 4*i)*1024}",
                        f"buffer_load_dwordx4 {vr(vDmaKV)}, {sr(S_K,4)}, {sr(sA)} offen{ntkv} lds"])
        if opt.get("qdiag"):
            pre = ["s_memtime s[84:85]"] + pre[:1] + ["s_waitcnt lgkmcnt(0)"] + pre[1:] + [f"v_writelane_b32 v252, s84, {s}", "s_memtime s[86:87]", "s_waitcnt lgkmcnt(0)", f"v_writelane_b32 v253, s86, {s+1}"]
        a.ext(pre)
        a.ext(interleave(mf, fill))
    stamp()
    a(f"s_mov_b32 {sr(sA)}, {hex(f32bits(SCALE))}")
    a(f"s_mul_i32 {sr(sBt)}, {sr(sW)}, 12288")
    a(f"s_add_u32 {sr(sBt)}, {sr(sBt)}, {QEX}")
    a(f"v_add_u32 v15, {sr(sBt)}, {vr(vL16)}")
    a(f"s_mul_i32 {sr(sBt)}, {sr(sQH)}, 24576")
    a(f"s_add_u32 {sr(sBt)}, {sr(sBt)}, {QEX}")
    a(f"v_add_u32 v14, {sr(sBt)}, {vr(vL16)}")
    for r in range(48):
        a(f"v_mov_b32 {vr(CI+r)}, 0")
    for r in range(24):
        a(f"v_mov_b32 {vr(PB+r)}, 0")
    for j in range(3):
        a(f"v_mov_b32 {vr(vLs+j)}, 0")
    for dt in range(2):
        for qt in range(3):
            acc = qacc(qt, dt)
            for r in range(16):
                a(f"v_mul_f32 {vr(acc+r)}, {sr(sA)}, {vr(acc+r)}")
            for half in range(2):
                t = SB + (qt * 4 + 2 * dt + half) * 4
                for e in range(4):
                    a(f"v_cvt_pk_bf16_f32 {vr(t+e)}, {vr(acc+8*half+2*e)}, {vr(acc+8*half+2*e+1)}")
                a(f"ds_write_b128 v15, {vr(t,4)} offset:{(qt*4+2*dt+half)*1024}")
    a("s_waitcnt lgkmcnt(0)")
    a("s_barrier")
    for qt in range(3):
        for ks in range(8):
            a(f"ds_read_b128 {ar(QF + (qt*8+ks)*4, 4)}, v14 offset:{(ks>>2)*12288 + (qt*4 + (ks&3))*1024}")
    for ks in range(8):
        a(f"ds_read_b128 {ar(KF+4*ks,4)}, {vr(vKlane)} offset:{KBASE + (ks>>1)*256 + (ks&1)*32}")
    for r in range(96):
        a(f"v_mov_b32 {vr(OK+r)}, 0")
    for r in range(96):
        a(f"v_accvgpr_write_b32 {ar(OS+r)}, 0")
    for r in range(32):
        a(f"v_accvgpr_write_b32 {ar(VF+r)}, 0")
    a("s_waitcnt vmcnt(8) lgkmcnt(0)")
    a("s_barrier")
    for p in range(4):
        a(f"s_add_u32 m0, {sr(sWld)}, {WOST + p*1024}")
        a(f"s_lshl_b32 {sr(sA)}, {sr(sW)}, 8")
        a(f"s_add_u32 {sr(sA)}, {sr(sA)}, {p*4096}")
        if p == 0:
            a(f"v_and_b32 v15, 0xff, {vr(vDmaKV)}")
            a(f"v_lshrrev_b32 v14, 8, {vr(vDmaKV)}")
            a(f"v_lshl_add_u32 v15, v14, 10, v15")
        a(f"buffer_load_dwordx4 v15, {sr(S_WO,4)}, {sr(sA)} offen lds")
    a(f"s_lshl_b32 {sr(sVg)}, {sr(sW)}, 12")
    a(f"s_add_u32 {sr(sVl)}, {sr(sVg)}, {VBASE}")
    a(f"s_mul_i32 {sr(sKl)}, {sr(sW)}, {4*KPS}")
    for g in (2, 3):
        a(f"s_add_u32 m0, {sr(sVl)}, {g*VSLOT}")
        a(f"s_add_u32 {sr(sA)}, {sr(sVg)}, {g*16384}")
        for p in range(4):
            a(f"buffer_load_dwordx4 {vr(vDmaKV)}, {sr(S_V,4)}, {sr(sA)} offen offset:{p*1024}{ntkv} lds")
    a(f"s_add_u32 {sr(sA)}, {sr(sVg)}, {4*16384}")
    for p in range(4):
        a(f"s_add_u32 m0, {sr(sKl)}, {KBASE + p*16}")
        a("s_nop 0")
        a(f"buffer_load_dwordx4 {vr(vDmaKV)}, {sr(S_K,4)}, {sr(sA)} offen offset:{p*1024}{ntkv} lds")

    def qk(j):
        out = []
        for ks in range(8):
            d = vr(SB + 16 * j, 16)
            c = vr(CI + 16 * j, 16) if ks == 0 else d
            out.append(f"{MFMA} {d}, {ar(KF+4*ks,4)}, {ar(QF+(j*8+ks)*4,4)}, {c}")
        return out

    def oacc(j, acc):
        if acc < 2:
            return vr(OK + (j * 2 + acc) * 16, 16)
        return ar(OS + (j * 2 + acc - 2) * 16, 16)

    def vf(kj, acc):
        return VF + (kj * 4 + acc) * 4

    def pv(j):
        out = []
        for kj in range(2):
            for acc in range(4):
                d = oacc(j, acc)
                out.append(f"{MFMA} {d}, {ar(vf(kj,acc),4)}, {vr(PB+8*j+4*kj,4)}, {d}")
        return out

    def maxchain(j):
        s = SB + 16 * j
        out = [f"v_max3_f32 {vr(vMx)}, {vr(s)}, {vr(s+1)}, {vr(s+2)}"]
        for r in range(3, 15, 2):
            out.append(f"v_max3_f32 {vr(vMx)}, {vr(vMx)}, {vr(s+r)}, {vr(s+r+1)}")
        out.append(f"v_max_f32 {vr(vMx)}, {vr(vMx)}, {vr(s+15)}")
        return out

    def check(j, tag):
        return [f"v_cmp_lt_f32 vcc, {sr(sT)}, {vr(vMx)}",
                f"s_cbranch_vccnz L_rare{j}_{tag}",
                f"L_back{j}_{tag}:"]

    def emit_list(lst):
        for x in lst:
            if x.endswith(":"):
                a.label(x[:-1])
            else:
                a(x)

    rare_sites = []

    a(f"s_mov_b32 {sr(sT)}, 0xff7fffff")
    a(f"s_mov_b32 {sr(sFloor)}, 0xff7fffff")
    a(f"s_mov_b32 {sr(sFirst)}, 1")
    a(f"s_mov_b32 {sr(sI)}, 0")
    stamp()
    a.ext(qk(0))
    a("s_nop 15")
    a.ext(maxchain(0))
    emit_list(check(0, "p"))
    rare_sites.append((0, "p"))
    a(f"s_add_u32 {sr(sVg)}, {sr(sVg)}, {4*16384}")
    a(f"s_mov_b32 {sr(sRV)}, 0")
    a(f"s_mov_b32 {sr(sRK)}, {KSLOT}")
    a(".p2align 6")
    a.label("L_loop")

    def softmax_fill(j, fill, base):
        s = SB + 16 * j
        for g in range(16):
            lst = fill.setdefault(base + g, [])
            lst.append(f"v_exp_f32 {vr(s+g)}, {vr(s+g)}")
            if g >= 1:
                lst.append(f"v_add_f32 {vr(vLs+j)}, {vr(vLs+j)}, {vr(s+g-1)}")
            if g >= 2 and g % 2 == 0:
                lst.append(f"v_cvt_pk_bf16_f32 {vr(PB+8*j+(g-2)//2)}, {vr(s+g-2)}, {vr(s+g-1)}")
        return [f"v_add_f32 {vr(vLs+j)}, {vr(vLs+j)}, {vr(s+15)}",
                f"v_cvt_pk_bf16_f32 {vr(PB+8*j+7)}, {vr(s+14)}, {vr(s+15)}"]

    mf = []
    fill = {}
    for j in range(3):
        jn = (j + 1) % 3
        jp = (j + 2) % 3
        base = 16 * j
        mf += qk(jn) + pv(jp)
        tail = softmax_fill(j, fill, base)
        mc = maxchain(jn)
        for i, x in enumerate(mc):
            fill.setdefault(base + 11 + i // 2, []).append(x)
        fill.setdefault(base + 15, []).extend(tail + check(jn, "l"))
        rare_sites.append((jn, "l"))
    pre = [f"v_add_u32 {vr(vVA)}, {sr(sRV)}, {vr(vVAl)}",
           f"v_add_u32 {vr(vVB)}, {sr(sRV)}, {vr(vVBl)}",
           f"v_add_u32 {vr(vKa)}, {sr(sRK)}, {vr(vKlane)}"]
    fill[0] = pre + fill[0]
    for kj in range(2):
        for acc in range(4):
            g = 8 + kj * 4 + acc
            areg = vVA if acc < 2 else vVB
            rd = [f"ds_read_b64_tr_b16 {ar(vf(kj,acc)+2*i,2)}, {vr(areg)} offset:{(4*kj+2*i)*1024 + (acc&1)*256}" for i in range(2)]
            fill[g] = rd + fill[g]
    for ks in range(8):
        g = 16 + ks
        fill[g] = [f"ds_read_b128 {ar(KF+4*ks,4)}, {vr(vKa)} offset:{KBASE + (ks>>1)*256 + (ks&1)*32}"] + fill[g]
    fill[23].append("s_waitcnt lgkmcnt(8)")
    if opt.get("itdiag"):
        fill[31].extend(["s_memtime s[80:81]", "s_waitcnt vmcnt(16) lgkmcnt(0)", "s_barrier",
                         f"s_mov_b32 m0, {sr(sI)}", "s_nop 0",
                         f"v_writelane_b32 v252, s80, m0",
                         f"v_writelane_b32 v253, s82, m0",
                         "s_memtime s[82:83]"])
    else:
        fill[31].extend(["s_waitcnt vmcnt(16) lgkmcnt(0)", "s_barrier"])
    fill[31].extend([
                     f"s_mov_b32 {sr(sT)}, 0x41000000",
                     f"s_mov_b32 {sr(sFloor)}, 0",
                     f"s_mov_b32 {sr(sFirst)}, 0"])
    fill[29] = [f"s_cmp_lt_u32 {sr(sI)}, {0 if opt.get('nodma') else 12}",
                f"s_cselect_b32 {sr(S_V+2)}, 0x40000, 0"] + fill[29]
    fill[30] = [f"s_cmp_lt_u32 {sr(sI)}, {0 if opt.get('nodma') else 11}",
                f"s_cselect_b32 {sr(S_K+2)}, 0x40000, 0"] + fill[30]
    dm = []
    dm.append([f"s_add_u32 m0, {sr(sVl)}, {sr(sRV)}",
               f"s_add_u32 {sr(sKg)}, {sr(sVg)}, 16384",
               f"buffer_load_dwordx4 {vr(vDmaKV)}, {sr(S_V,4)}, {sr(sVg)} offen{ntkv} lds"])
    for p in range(1, 4):
        dm.append([f"buffer_load_dwordx4 {vr(vDmaKV)}, {sr(S_V,4)}, {sr(sVg)} offen offset:{p*1024}{ntkv} lds"])
    for p in range(4):
        m = f"s_add_u32 m0, {sr(sKl)}, {sr(sRK)}" if p == 0 else "s_add_u32 m0, m0, 16"
        dm.append([m, "s_nop 0",
                   f"buffer_load_dwordx4 {vr(vDmaKV)}, {sr(S_K,4)}, {sr(sKg)} offen offset:{p*1024}{ntkv} lds"])
    for i, it in enumerate(dm):
        fill[32 + i] = it + fill[32 + i]
    fill[41] = [f"s_add_u32 {sr(sVg)}, {sr(sVg)}, 16384",
                f"s_add_u32 {sr(sRV)}, {sr(sRV)}, {VSLOT}",
                f"s_and_b32 {sr(sRV)}, {sr(sRV)}, {4*VSLOT-1}",
                f"s_add_u32 {sr(sRK)}, {sr(sRK)}, {KSLOT}"] + fill[41]
    fill[42] = [f"s_cmp_eq_u32 {sr(sRK)}, {4*KSLOT}",
                f"s_cselect_b32 {sr(sRK)}, 0, {sr(sRK)}",
                f"s_add_u32 {sr(sI)}, {sr(sI)}, 1"] + fill[42]
    fill[43] = [f"s_cmp_eq_u32 {sr(sI)}, 16",
                f"s_cselect_b32 {sr(sT)}, 0x7f800000, {sr(sT)}"] + fill[43]
    body = interleave(mf, fill)
    if opt.get("nocomp"):
        body = [x for x in body if not (x.startswith("v_mfma") or x.startswith("v_exp") or x.startswith("v_add_f32") or x.startswith("v_cvt") or x.startswith("v_max") or x.startswith("ds_read"))]
    if opt.get("nolds"):
        body = [x for x in body if not x.startswith("ds_read")]
    if opt.get("novalu"):
        body = [x for x in body if not (x.startswith("v_exp") or x.startswith("v_add_f32") or x.startswith("v_cvt") or x.startswith("v_max"))]
    emit_list(body)
    a(f"s_cmp_lt_u32 {sr(sI)}, 16")
    a("s_cbranch_scc1 L_loop")
    a.ext(pv(2))
    stamp()
    a("s_waitcnt vmcnt(0)")
    t0 = SB
    for nt in range(4):
        for i in range(2):
            a(f"ds_read_b64_tr_b16 {vr(t0+nt*4+2*i,2)}, {vr(vWo)} offset:{i*1024 + nt*256}")
    ml = PB
    for j in range(3):
        a(f"v_mov_b32 {vr(ml+4+j)}, {vr(vLs+j)}")
        a(f"v_sub_f32 {vr(ml+j)}, 0, {vr(CI+16*j)}")
    a("s_nop 1")
    for j in range(3):
        a(f"v_permlane32_swap_b32 {vr(ml+4+j)}, {vr(vLs+j)}")
    a("s_nop 1")
    for j in range(3):
        a(f"v_add_f32 {vr(ml+4+j)}, {vr(ml+4+j)}, {vr(vLs+j)}")
    a(f"s_mul_i32 {sr(sA)}, {sr(sW)}, 24576")
    a(f"v_add_u32 v15, {sr(sA)}, {vr(vL16)}")
    a(f"s_xor_b32 {sr(sBt)}, {sr(sW)}, 1")
    a(f"s_mul_i32 {sr(sA)}, {sr(sBt)}, 24576")
    a(f"v_add_u32 v14, {sr(sA)}, {vr(vL16)}")
    a(f"s_lshl_b32 {sr(sA)}, {sr(sW)}, 11")
    a(f"s_add_u32 {sr(sA)}, {sr(sA)}, {EX_ML}")
    a(f"v_add_u32 v13, {sr(sA)}, {vr(vL16)}")
    a(f"s_lshl_b32 {sr(sA)}, {sr(sBt)}, 11")
    a(f"s_add_u32 {sr(sA)}, {sr(sA)}, {EX_ML}")
    a(f"v_add_u32 v12, {sr(sA)}, {vr(vL16)}")
    a("s_barrier")
    a(f"ds_write_b128 v13, {vr(ml,4)}")
    a(f"ds_write_b128 v13, {vr(ml+4,4)} offset:1024")
    for idx in range(24):
        a(f"ds_write_b128 v15, {ar(OS+4*idx,4)} offset:{idx*1024}")
    a(f"s_lshl_b32 {sr(sA)}, {sr(sW)}, 20")
    a(f"s_lshl_b32 {sr(sBt)}, s2, 10")
    a(f"s_add_u32 {sr(sA)}, {sr(sA)}, {sr(sBt)}")
    a(f"s_add_u32 {sr(sA)}, {sr(sA)}, {WS_WOT}")
    a("s_waitcnt lgkmcnt(0)")
    for nt in range(4):
        a(f"buffer_store_dwordx4 {vr(t0+nt*4,4)}, {vr(vL16)}, {sr(S_WS,4)}, {sr(sA)} offen{pst}")
        if nt < 3:
            a(f"s_add_u32 {sr(sA)}, {sr(sA)}, 262144")
    a("s_barrier")
    pm = PB + 8
    a(f"ds_read_b128 {vr(pm,4)}, v12")
    a(f"ds_read_b128 {vr(pm+4,4)}, v12 offset:1024")
    RB1 = CI
    RB2 = 208 + 0
    def rb(idx):
        if idx < 12:
            return CI + 4 * idx
        if idx < 20:
            return SB + 16 + 4 * (idx - 12)
        return 236 + 4 * (idx - 20)
    for idx in range(13):
        a(f"ds_read_b128 {vr(rb(idx),4)}, v14 offset:{idx*1024}")
    a("s_waitcnt lgkmcnt(13)")
    g0 = PB + 16
    for j in range(3):
        a(f"v_max_f32 v15, {vr(ml+j)}, {vr(pm+j)}")
        a(f"v_sub_f32 {vr(g0+j)}, {vr(ml+j)}, v15")
        a(f"v_sub_f32 {vr(g0+3+j)}, {vr(pm+j)}, v15")
        a(f"v_exp_f32 {vr(g0+j)}, {vr(g0+j)}")
        a(f"v_exp_f32 {vr(g0+3+j)}, {vr(g0+3+j)}")
        a("s_nop 0")
        a(f"v_mul_f32 v15, {vr(g0+j)}, {vr(ml+4+j)}")
        a(f"v_fma_f32 v15, {vr(g0+3+j)}, {vr(pm+4+j)}, v15")
        a(f"v_rcp_f32 v15, v15")
        a("s_nop 0")
        a(f"v_mul_f32 {vr(g0+j)}, {vr(g0+j)}, v15")
        a(f"v_mul_f32 {vr(g0+3+j)}, {vr(g0+3+j)}, v15")
    for idx in range(13, 24):
        a(f"ds_read_b128 {vr(rb(idx),4)}, v14 offset:{idx*1024}")
    a(f"s_lshl_b32 {sr(sA)}, {sr(sB)}, 1")
    a(f"s_add_u32 {sr(sA)}, {sr(sA)}, {sr(sQH)}")
    a(f"s_lshl_b32 {sr(sA)}, {sr(sA)}, 8")
    a(f"s_lshl_b32 {sr(sBt)}, {sr(sH)}, 3")
    a(f"s_add_u32 {sr(sA)}, {sr(sA)}, {sr(sBt)}")
    a(f"s_lshl_b32 {sr(sBt)}, {sr(sKH)}, 2")
    a(f"s_add_u32 {sr(sA)}, {sr(sA)}, {sr(sBt)}")
    a(f"s_mul_i32 {sr(sA)}, {sr(sA)}, 3072")
    for j in range(3):
        for acc in range(2):
            o = OK + (j * 2 + acc) * 16
            for half in range(2):
                idx0 = (j * 2 + acc) * 4 + half * 2
                a(f"s_waitcnt lgkmcnt({min(15, 22 - idx0)})")
                for e in range(8):
                    r = o + half * 8 + e
                    rr = rb(idx0 + e // 4) + (e & 3)
                    a(f"v_mul_f32 {vr(r)}, {vr(g0+j)}, {vr(r)}")
                    a(f"v_fmac_f32 {vr(r)}, {vr(g0+3+j)}, {vr(rr)}")
                t = o + half * 8
                for e in range(4):
                    a(f"v_cvt_pk_bf16_f32 {vr(t+e)}, {vr(t+2*e)}, {vr(t+2*e+1)}")
                off = ((2 * acc + half) * 3 + j) * 1024
                a(f"s_add_u32 {sr(sBt)}, {sr(sA)}, {off + WS_O}")
                a(f"buffer_store_dwordx4 {vr(t,4)}, {vr(vL16)}, {sr(S_WS,4)}, {sr(sBt)} offen{pst}")
    stamp()
    if diag:
        a("s_waitcnt vmcnt(0)")
        stamp()
        a(f"s_memrealtime {sr(sSt + 2*nstamp[0], 2)}")
        a("s_waitcnt lgkmcnt(0)")
        n = nstamp[0]
        a("v_mov_b32 v20, 0")
        for i in range(2 * n + 4):
            a(f"v_writelane_b32 v20, s{58+i}, {i}")
        a(f"s_getreg_b32 {sr(sA)}, hwreg(HW_REG_XCC_ID)")
        a(f"v_writelane_b32 v20, {sr(sA)}, 63")
        a(f"s_lshl_b32 {sr(sA)}, s2, 2")
        a(f"s_add_u32 {sr(sA)}, {sr(sA)}, {sr(sW)}")
        a(f"s_lshl_b32 {sr(sA)}, {sr(sA)}, 8")
        a(f"s_add_u32 {sr(sA)}, {sr(sA)}, {WS_DIAG}")
        a(f"v_lshlrev_b32 v21, 2, {vr(vL)}")
        a(f"buffer_store_dword v20, v21, {sr(S_WS,4)}, {sr(sA)} offen")
        if opt.get("itdiag") or opt.get("qdiag"):
            if opt.get("itdiag"):
                a(f"v_writelane_b32 v253, s82, 16")
            a(f"s_add_u32 {sr(sA)}, {sr(sA)}, {2<<20}")
            a(f"buffer_store_dword v252, v21, {sr(S_WS,4)}, {sr(sA)} offen")
            a(f"s_add_u32 {sr(sA)}, {sr(sA)}, {1<<20}")
            a(f"buffer_store_dword v253, v21, {sr(S_WS,4)}, {sr(sA)} offen")
    a.label("L_attn_end")
    a("s_endpgm")
    for j, tag in rare_sites:
        a.label(f"L_rare{j}_{tag}")
        a(f"v_mov_b32 {vr(vT0)}, {vr(vMx)}")
        a("s_nop 1")
        a(f"v_permlane32_swap_b32 {vr(vT0)}, {vr(vMx)}")
        a("s_nop 1")
        a(f"v_max3_f32 {vr(vMx)}, {vr(vMx)}, {vr(vT0)}, {sr(sFloor)}")
        for r in range(16):
            a(f"v_sub_f32 {vr(SB+16*j+r)}, {vr(SB+16*j+r)}, {vr(vMx)}")
        a(f"v_sub_f32 {vr(CI+16*j)}, {vr(CI+16*j)}, {vr(vMx)}")
        for r in range(1, 16):
            a(f"v_mov_b32 {vr(CI+16*j+r)}, {vr(CI+16*j)}")
        a(f"s_cmp_eq_u32 {sr(sFirst)}, 1")
        a(f"s_cbranch_scc1 L_back{j}_{tag}")
        a(f"v_sub_f32 {vr(vT0)}, 0, {vr(vMx)}")
        a(f"v_exp_f32 {vr(vT0)}, {vr(vT0)}")
        a("s_nop 0")
        a(f"v_mul_f32 {vr(vLs+j)}, {vr(vLs+j)}, {vr(vT0)}")
        for r in range(32):
            a(f"v_mul_f32 {vr(OK+32*j+r)}, {vr(OK+32*j+r)}, {vr(vT0)}")
        for r in range(32):
            a(f"v_accvgpr_read_b32 {vr(vMx)}, {ar(OS+32*j+r)}")
            a(f"v_mul_f32 {vr(vMx)}, {vr(vMx)}, {vr(vT0)}")
            a(f"v_accvgpr_write_b32 {ar(OS+32*j+r)}, {vr(vMx)}")
        a("s_nop 1")
        a(f"s_branch L_back{j}_{tag}")


def gen_oproj(a, opt):
    D = opt.get("oD", 8)
    p2 = " nt" if opt.get("nt_o") else ""
    S_O, S_W, S_OUT = 8, 12, 16
    sW, sMT, sNT, sA, sBt, sOo, sWo_, sI = 20, 21, 22, 23, 24, 25, 26, 27
    vL, vL16 = 1, 2
    ACC = 16
    a.label("oproj_kernel")
    a("s_cmp_ge_u32 s2, 256")
    a("s_cbranch_scc1 L_oproj_end")
    a("s_load_dwordx2 s[4:5], s[0:1], 40")
    a("s_load_dwordx2 s[6:7], s[0:1], 56")
    if opt.get("diag"):
        a("s_memrealtime s[40:41]")
        a("s_memtime s[42:43]")
    a("v_lshrrev_b32 v3, 6, v0")
    a(f"v_and_b32 {vr(vL)}, 63, v0")
    a(f"v_lshlrev_b32 {vr(vL16)}, 4, {vr(vL)}")
    a(f"v_readfirstlane_b32 {sr(sW)}, v3")
    a(f"s_bfe_u32 {sr(sA)}, s2, 0x20001")
    a(f"s_lshl_b32 {sr(sA)}, {sr(sA)}, 2")
    a(f"s_bfe_u32 {sr(sBt)}, s2, 0x20003")
    a(f"s_add_u32 {sr(sMT)}, {sr(sA)}, {sr(sBt)}")
    a(f"s_and_b32 {sr(sA)}, s2, 1")
    a(f"s_lshl_b32 {sr(sA)}, {sr(sA)}, 3")
    a(f"s_lshr_b32 {sr(sBt)}, s2, 5")
    a(f"s_add_u32 {sr(sNT)}, {sr(sA)}, {sr(sBt)}")
    a(f"s_mul_i32 {sr(sOo)}, {sr(sW)}, {64*3072}")
    a(f"s_lshl_b32 {sr(sWo_)}, {sr(sW)}, 16")
    a("s_waitcnt lgkmcnt(0)")
    a(f"s_mul_i32 {sr(sA)}, {sr(sMT)}, {256*3072}")
    a(f"s_add_u32 {sr(S_O)}, s6, {sr(sA)}")
    a(f"s_addc_u32 {sr(S_O+1)}, s7, 0")
    a(f"s_mov_b32 {sr(S_O+2)}, {256*3072}")
    a(f"s_mov_b32 {sr(S_O+3)}, 0x20000")
    a(f"s_lshl_b32 {sr(sA)}, {sr(sNT)}, 18")
    a(f"s_add_u32 {sr(sA)}, {sr(sA)}, {WS_WOT}")
    a(f"s_add_u32 {sr(S_W)}, s6, {sr(sA)}")
    a(f"s_addc_u32 {sr(S_W+1)}, s7, 0")
    a(f"s_mov_b32 {sr(S_W+2)}, 262144")
    a(f"s_mov_b32 {sr(S_W+3)}, 0x20000")

    def loads(d):
        b = 16 * d
        return [f"buffer_load_dwordx4 {ar(b,4)}, {vr(vL16)}, {sr(S_W,4)}, {sr(sWo_)} offen{p2}",
                f"buffer_load_dwordx4 {ar(b+4,4)}, {vr(vL16)}, {sr(S_O,4)}, {sr(sOo)} offen{p2}",
                f"buffer_load_dwordx4 {ar(b+8,4)}, {vr(vL16)}, {sr(S_O,4)}, {sr(sOo)} offen offset:1024{p2}",
                f"buffer_load_dwordx4 {ar(b+12,4)}, {vr(vL16)}, {sr(S_O,4)}, {sr(sOo)} offen offset:2048{p2}",
                f"s_add_u32 {sr(sWo_)}, {sr(sWo_)}, 1024",
                f"s_add_u32 {sr(sOo)}, {sr(sOo)}, 3072"]

    def mf(d):
        b = 16 * d
        return [f"{MFMA} {vr(ACC+16*q,16)}, {ar(b,4)}, {ar(b+4+4*q,4)}, {vr(ACC+16*q,16)}" for q in range(3)]

    for d in range(D):
        a.ext(loads(d))
    a(f"s_mov_b32 {sr(S_OUT)}, s4")
    a(f"s_mov_b32 {sr(S_OUT+1)}, s5")
    a(f"s_mov_b32 {sr(S_OUT+2)}, {1536*1024}")
    a(f"s_mov_b32 {sr(S_OUT+3)}, 0x20000")
    for r in range(48):
        a(f"v_mov_b32 {vr(ACC+r)}, 0")
    a(f"s_mov_b32 {sr(sI)}, {64//D - 1}")
    a.label("L_oloop")
    for d in range(D):
        a(f"s_waitcnt vmcnt({4*(D-1)})")
        a.ext(mf(d))
        a.ext(loads(d))
    a(f"s_sub_u32 {sr(sI)}, {sr(sI)}, 1")
    a(f"s_cmp_lg_u32 {sr(sI)}, 0")
    a("s_cbranch_scc1 L_oloop")
    for d in range(D):
        a(f"s_waitcnt vmcnt({4*(D-1-d)})")
        a.ext(mf(d))
    if opt.get("diag"):
        a("s_memtime s[44:45]")
    a(f"s_mul_i32 {sr(sA)}, {sr(sW)}, 12288")
    a(f"v_add_u32 v3, {sr(sA)}, {vr(vL16)}")
    a(f"s_mul_i32 {sr(sA)}, {sr(sW)}, 3072")
    a(f"v_add_u32 v4, {sr(sA)}, {vr(vL16)}")
    a(f"v_and_b32 v5, 31, {vr(vL)}")
    a(f"v_lshlrev_b32 v5, 10, v5")
    a(f"v_lshrrev_b32 v6, 5, {vr(vL)}")
    a(f"v_lshl_add_u32 v5, v6, 4, v5")
    a("s_nop 7")
    for idx in range(12):
        a(f"ds_write_b128 v3, {vr(ACC+4*idx,4)} offset:{idx*1024}")
    a("s_waitcnt lgkmcnt(0)")
    a("s_barrier")
    R = 64
    for i in range(3):
        for w in range(4):
            a(f"ds_read_b128 {vr(R+(i*4+w)*4,4)}, v4 offset:{w*12288 + i*1024}")
    a(f"s_mul_i32 {sr(sOo)}, {sr(sMT)}, {96*1024}")
    a(f"s_lshl_b32 {sr(sA)}, {sr(sNT)}, 6")
    a(f"s_add_u32 {sr(sOo)}, {sr(sOo)}, {sr(sA)}")
    a(f"s_mul_i32 {sr(sI)}, {sr(sW)}, 3")
    for i in range(3):
        a(f"s_waitcnt lgkmcnt({8-4*i})")
        b = R + i * 16
        for e in range(4):
            a(f"v_add_f32 {vr(b+e)}, {vr(b+e)}, {vr(b+4+e)}")
            a(f"v_add_f32 {vr(b+8+e)}, {vr(b+8+e)}, {vr(b+12+e)}")
        for e in range(4):
            a(f"v_add_f32 {vr(b+e)}, {vr(b+e)}, {vr(b+8+e)}")
        a(f"v_cvt_pk_bf16_f32 {vr(b)}, {vr(b)}, {vr(b+1)}")
        a(f"v_cvt_pk_bf16_f32 {vr(b+1)}, {vr(b+2)}, {vr(b+3)}")
        a(f"s_lshr_b32 {sr(sA)}, {sr(sI)}, 2")
        a(f"s_lshl_b32 {sr(sA)}, {sr(sA)}, 15")
        a(f"s_add_u32 {sr(sA)}, {sr(sA)}, {sr(sOo)}")
        a(f"s_and_b32 {sr(sBt)}, {sr(sI)}, 2")
        a(f"s_lshl_b32 {sr(sBt)}, {sr(sBt)}, 4")
        a(f"s_add_u32 {sr(sA)}, {sr(sA)}, {sr(sBt)}")
        a(f"s_and_b32 {sr(sBt)}, {sr(sI)}, 1")
        a(f"s_lshl_b32 {sr(sBt)}, {sr(sBt)}, 3")
        a(f"s_add_u32 {sr(sA)}, {sr(sA)}, {sr(sBt)}")
        a(f"buffer_store_dwordx2 {vr(b,2)}, v5, {sr(S_OUT,4)}, {sr(sA)} offen")
        a(f"s_add_u32 {sr(sI)}, {sr(sI)}, 1")
    if opt.get("diag"):
        a("s_waitcnt vmcnt(0)")
        a("s_memtime s[46:47]")
        a("s_memrealtime s[48:49]")
        a("s_waitcnt lgkmcnt(0)")
        a("v_mov_b32 v20, 0")
        for i in range(10):
            a(f"v_writelane_b32 v20, s{40+i}, {i}")
        a(f"s_lshl_b32 {sr(sA)}, s2, 2")
        a(f"s_add_u32 {sr(sA)}, {sr(sA)}, {sr(sW)}")
        a(f"s_lshl_b32 {sr(sA)}, {sr(sA)}, 8")
        a(f"s_add_u32 {sr(sA)}, {sr(sA)}, {WS_DIAG + (1<<20)}")
        a(f"v_lshlrev_b32 v21, 2, {vr(vL)}")
        a("s_mov_b32 s28, s6")
        a("s_mov_b32 s29, s7")
        a(f"s_mov_b32 s30, {WS_SIZE}")
        a("s_mov_b32 s31, 0x20000")
        a(f"buffer_store_dword v20, v21, s[28:31], {sr(sA)} offen")
    a.label("L_oproj_end")
    a("s_endpgm")


def kd(name, vgpr, accum, sgpr=102):
    return f""".p2align 6
.amdhsa_kernel {name}
  .amdhsa_next_free_vgpr {vgpr}
  .amdhsa_next_free_sgpr {sgpr}
  .amdhsa_accum_offset {accum}
  .amdhsa_group_segment_fixed_size 0
  .amdhsa_kernarg_size 64
  .amdhsa_user_sgpr_count 2
  .amdhsa_user_sgpr_kernarg_segment_ptr 1
  .amdhsa_system_sgpr_workgroup_id_x 1
  .amdhsa_float_denorm_mode_32 3
.end_amdhsa_kernel
"""


def generate(opt):
    hdr = f"""; GQA block (q-proj + attention + out-proj), generated by work/gen.py
; @launch kernel=attn_kernel grid=(256,1,1) block=(256,1,1) lds={LDS1}
; @launch kernel=oproj_kernel grid=(256,1,1) block=(256,1,1) lds=49152
.amdgcn_target "amdgcn-amd-amdhsa--gfx950"
.text
"""
    out = hdr
    a = A()
    gen_attn(a, opt)
    out += ".globl attn_kernel\n.p2align 8\n.type attn_kernel,@function\n" + a.text()
    a = A()
    gen_oproj(a, opt)
    out += ".globl oproj_kernel\n.p2align 8\n.type oproj_kernel,@function\n" + a.text()
    out += '.section .rodata,"a"\n'
    out += kd("attn_kernel", 512, 256)
    out += kd("oproj_kernel", 128 + 16 * opt.get("oD", 8), 128)
    return out


if __name__ == "__main__":
    opt = {}
    path = f"cdna_kernels/{NAME}.s"
    for arg in sys.argv[1:]:
        if arg.startswith("-o="):
            path = arg[3:]
        elif "=" in arg:
            k, v = arg.split("=")
            opt[k] = int(v)
        else:
            opt[arg] = True
    open(path, "w").write(generate(opt))
    print("wrote", path)
```

```python
import sys
import math
from gen1 import vr, ar, sr, f32bits, NAME

MF = "v_mfma_f32_16x16x32_bf16"
PS = 1056
KSZ = 16 * PS
SLOT = 2 * KSZ
QBSZ = 16384 + 24 * PS
QB = {2: SLOT, 0: SLOT + QBSZ, 1: SLOT + 2 * QBSZ}
QEX = 3 * SLOT
LDS = 163840
WS_FLG = 16 << 20
FST = 1152
WS_DIAG = 32 << 20
WS_SIZE = 64 << 20
TS = 131072 + 128
SCALE = math.log2(math.e) / math.sqrt(128.0)


class Em:
    def __init__(self):
        self.l = []
        self.vm = []
        self.ds = []
        self.vmdone = 0
        self.dsdone = 0

    def __call__(self, x):
        if isinstance(x, list):
            for y in x:
                self(y)
            return
        if isinstance(x, str):
            if x.endswith(":"):
                self.l.append(x)
            else:
                assert not x.startswith("ds_") and not (x.startswith("buffer_") and "untracked" not in x), x
                self.l.append("    " + x.replace(" untracked", ""))
            return
        k = x[0]
        if k == "vm":
            self.vm.append(x[1]); self.l.append("    " + x[2])
        elif k == "ds":
            self.ds.append(x[1]); self.l.append("    " + x[2])
        elif k == "cap":
            n = x[1]
            if len(self.vm) - self.vmdone > n:
                self.l.append(f"    s_waitcnt vmcnt({n})")
                self.vmdone = len(self.vm) - n
        elif k == "condcap":
            idx = [i for i, t in enumerate(self.vm) if t[0] in "KV" and t[1:].isdigit()]
            last = idx[len(idx) - x[1] - 1] + 1
            if last > self.vmdone:
                n = min(63, len(self.vm) - last)
                self.l += [f"    {x[2]}", f"    s_cbranch_scc1 {x[3]}", f"    s_waitcnt vmcnt({n})", f"{x[3]}:"]
        elif k == "capkv":
            idx = [i for i, t in enumerate(self.vm) if t[0] in "KV" and t[1:].isdigit()]
            if len(idx) > x[1]:
                last = idx[len(idx) - x[1] - 1] + 1
                if last > self.vmdone:
                    n = min(63, len(self.vm) - last)
                    self.l.append(f"    s_waitcnt vmcnt({n})")
                    self.vmdone = len(self.vm) - n
        elif k == "wait":
            parts = []
            for tags, ops, nm, cap, attr in ((x[1], self.vm, "vmcnt", 63, "vmdone"), (x[2], self.ds, "lgkmcnt", 15, "dsdone")):
                if tags is None:
                    continue
                if tags == "all":
                    parts.append(f"{nm}(0)"); setattr(self, attr, len(ops)); continue
                idx = [i for i, t in enumerate(ops) if t in tags]
                assert idx, (tags, nm)
                last = max(idx) + 1
                if last <= getattr(self, attr):
                    continue
                n = min(cap, len(ops) - last)
                parts.append(f"{nm}({n})"); setattr(self, attr, len(ops) - n)
            if parts:
                self.l.append("    s_waitcnt " + " ".join(parts))
        else:
            raise ValueError(x)

    def spine(self, mf, fill):
        for i, m in enumerate(mf):
            self(m)
            self(fill.get(i, []))
        assert all(g < len(mf) for g, v in fill.items() if v), (len(mf), [g for g, v in fill.items() if v])

    def text(self):
        return "\n".join(self.l) + "\n"


def spread(fill, items, g0, g1):
    n = len(items)
    for i, x in enumerate(items):
        fill.setdefault(g0 + (i * (g1 - g0)) // n, []).append(x)


def gen(a, opt):
    diag = opt.get("diag", False)
    TS = 131072 + opt.get("pad", 128)
    pol = {0: " sc1", 1: "", 2: " sc0 sc1", 3: " sc1 nt"}[opt.get("pol", 0)]
    S_X, S_WQ, S_K, S_V, S_WO, S_WS, S_DBG, S_OUT = 16, 20, 24, 28, 32, 36, 4, 8
    sW, sQH, sKH, sB, sH = 40, 41, 42, 43, 44
    sMask, sG, sRet = 47, 49, 50
    sKl = 52
    sLb, sD = 53, 54
    sA, sBt, sC = 55, 56, 57
    sSt = 60
    sXld, sWld, sRot, sXs, sWs = 91, 93, 94, 95, 96
    sMT, sNT, sOff, sOffW, sLl, sFl = 97, 98, 99, 14, 90, 15
    vL16, vL, vDmaKV, vBE, vDmaX = 0, 1, 2, 3, 4
    vBO, vTa, vTb = 14, 9, 10
    vK = [5, 8]
    vVA = [6, 9]
    vVB = [7, 10]
    vMx, vT0, vT1 = 11, 12, 13
    OK = 16
    SB = 112
    QACC = 112
    Preg = [160, 168, 208]
    CIr = [176, 216, 224]
    LA = 184
    ONES = 232
    ET = 236
    vX = [240, 241, 242]
    vW = [243, 244, 245]
    vDX = [246, 247, 248, 249, 250, 251]
    vDW = [252, 253, 254, 255]
    WT = 240
    VO = [0, 5, 6]
    OS, QF, KF, VF = 0, 96, 192, 224
    nt = " nt"
    nstamp = [0]
    NL = opt.get("NL", 15)

    scnt = [0]

    def stamp(extra=False):
        if not extra:
            scnt[0] += 1
            if opt.get("tdiag") and scnt[0] in (2, 3, 4, 9):
                return []
        elif not opt.get("tdiag"):
            return []
        if diag:
            r = f"{'s_memrealtime' if opt.get('rt') else 's_memtime'} {sr(sSt + 2 * nstamp[0], 2)}"
            nstamp[0] += 1
            return [r]
        return []

    a(f"{NAME}_kernel:")
    a("s_cmp_ge_u32 s2, 256")
    a("s_cbranch_scc1 L_end")
    a("s_load_dwordx8 s[72:79], s[0:1], 0")
    a("s_load_dwordx8 s[80:87], s[0:1], 32")
    if diag:
        a(f"s_memrealtime {sr(58, 2)}")
    a(stamp())
    a(f"v_lshrrev_b32 v15, 6, v0")
    a(f"v_and_b32 {vr(vL)}, 63, v0")
    a(f"s_and_b32 {sr(sA)}, s2, 7")
    a(f"v_readfirstlane_b32 {sr(sW)}, v15")
    a(f"s_lshl_b32 {sr(sA)}, {sr(sA)}, 2")
    a(f"s_bfe_u32 {sr(sBt)}, s2, 0x20003")
    a(f"s_add_u32 {sr(sH)}, {sr(sA)}, {sr(sBt)}")
    a(f"s_lshr_b32 {sr(sB)}, s2, 5")
    if opt.get("hmap") == 1:
        a(f"s_add_u32 {sr(sH)}, {sr(sH)}, 12")
        a(f"s_and_b32 {sr(sH)}, {sr(sH)}, 31")
    if opt.get("hmap") == 2:
        a(f"s_and_b32 {sr(sH)}, s2, 31")
    a(f"s_mul_i32 {sr(sRot)}, {sr(sBt)}, {opt.get('roth', 2)}")
    a(f"s_add_u32 {sr(sRot)}, {sr(sRot)}, {sr(sB)}")
    a(f"s_and_b32 {sr(sRot)}, {sr(sRot)}, {opt.get('rot2', 3)}")
    a(f"s_lshr_b32 {sr(sQH)}, {sr(sW)}, 1")
    a(f"s_and_b32 {sr(sKH)}, {sr(sW)}, 1")
    a(f"v_and_b32 v15, 3, {vr(vL)}")
    a(f"v_lshlrev_b32 v14, 4, v15")
    a(f"v_lshrrev_b32 v12, 4, {vr(vL)}")
    a(f"v_lshl_add_u32 v11, v12, 6, v14")
    a(f"v_bfe_u32 v13, {vr(vL)}, 2, 2")
    a(f"v_lshl_add_u32 {vr(vDmaKV)}, v13, 8, v11")
    a(f"v_lshl_add_u32 {vr(vDW[0])}, v13, 13, v11")
    a(f"v_lshrrev_b32 v10, 5, {vr(vL)}")
    a(f"v_lshl_add_u32 v11, v10, 6, v14")
    a(f"v_bfe_u32 v9, {vr(vL)}, 2, 3")
    a(f"v_lshl_add_u32 {vr(vDmaX)}, v9, 10, v11")
    a(f"s_mul_i32 {sr(sA)}, {sr(sW)}, {16*8192}")
    a(f"v_add_u32 {vr(vDW[0])}, {sr(sA)}, {vr(vDW[0])}")
    for p in range(1, 4):
        a(f"v_add_u32 {vr(vDW[p])}, {p*(4*8192 - 1024)}, {vr(vDW[0])}")
    a(f"s_mul_i32 {sr(sA)}, {sr(sW)}, {6*8192}")
    a(f"v_add_u32 {vr(vDX[0])}, {sr(sA)}, {vr(vDmaX)}")
    for p in range(1, 6):
        a(f"v_add_u32 {vr(vDX[p])}, {p*8192 - (p%3)*PS}, {vr(vDX[0])}")
    a(f"s_mul_i32 {sr(sXld)}, {sr(sW)}, {6*PS}")
    a(f"s_lshl_b32 {sr(sWld)}, {sr(sW)}, 12")
    a(f"s_mul_i32 {sr(sA)}, {sr(sB)}, 196608")
    a(f"s_lshl_b32 {sr(sBt)}, {sr(sH)}, 8")
    a(f"s_mov_b32 {sr(S_X+2)}, 196608")
    a(f"s_mov_b32 {sr(S_X+3)}, 0x20000")
    a(f"s_sub_u32 {sr(S_WQ+2)}, 0x400000, {sr(sBt)}")
    a(f"s_mov_b32 {sr(S_WQ+3)}, 0x20000")
    a("s_waitcnt lgkmcnt(0)")
    a(f"s_add_u32 {sr(S_X)}, s72, {sr(sA)}")
    a(f"s_addc_u32 {sr(S_X+1)}, s73, 0")
    a(f"s_add_u32 {sr(S_WQ)}, s78, {sr(sBt)}")
    a(f"s_addc_u32 {sr(S_WQ+1)}, s79, 0")

    def qgroup(s, nop=False):
        base = QB[s % 3]
        items = []
        for p in range(4):
            pre = []
            if p == 0:
                pre = [f"s_add_u32 {sr(sXs)}, {sr(sRot)}, {s}",
                       f"s_add_u32 m0, {sr(sWld)}, {base}",
                       f"s_and_b32 {sr(sXs)}, {sr(sXs)}, 7",
                       f"s_lshl_b32 {sr(sWs)}, {sr(sXs)}, 19"]
            post = [f"s_lshl_b32 {sr(sXs)}, {sr(sXs)}, 7"] if p == 0 else []
            if p == 3:
                post = [f"s_add_u32 m0, {sr(sXld)}, {base + 16384}"]
            items.append(pre + [("vm", f"Q{s}", f"buffer_load_dwordx4 {vr(vDW[p])}, {sr(S_WQ,4)}, {sr(sWs)} offen offset:{p*1024} lds")] + post)
        for p in range(6):
            pre = ["s_nop 0"] if (nop and p in (0, 3)) else []
            post = [f"s_add_u32 m0, m0, {3*PS}"] if p == 2 else []
            items.append(pre + [("vm", f"Q{s}", f"buffer_load_dwordx4 {vr(vDX[p])}, {sr(S_X,4)}, {sr(sXs)} offen offset:{(p%3)*PS} lds")] + post)
        return items

    def kvpieces(isK, g, ps=range(4)):
        items = []
        for p in ps:
            items.append([f"s_add_u32 m0, {sr(sKl)}, {(g%3)*SLOT + (0 if isK else KSZ) + p*32}",
                          ([f"s_add_u32 {sr(sG)}, s48, {g*16384}", f"s_and_b32 {sr(sG)}, {sr(sG)}, 0x3ffff"] if opt.get("krot") else f"s_mov_b32 {sr(sG)}, {g*16384}"),
                          ("vm", ("K" if isK else "V") + str(g),
                           f"buffer_load_dwordx4 {vr(vDmaKV)}, {sr(S_K if isK else S_V,4)}, {sr(sG)} offen offset:{p*1024}{nt} lds")])
        return items

    sOwn = 45

    def w0only(lbl, mask, body):
        return [f"s_cmp_lg_u32 {sr(sW)}, 0", f"s_cbranch_scc1 {lbl}", (f"s_mov_b64 exec, {mask}" if mask == 1 else "s_mov_b32 exec_hi, 0")] + body + ["s_mov_b64 exec, -1", f"{lbl}:"]

    def clearown():
        return w0only("L_c1", 1, [f"v_mov_b32 {vr(vT0)}, 0",
                                  f"buffer_store_dword {vr(vT0)}, {vr(vT0)}, {sr(S_WS,4)}, {sr(sOwn)} offen sc1 untracked"])

    def sigclear():
        return w0only("L_c2", 1, [f"v_mov_b32 {vr(vT0)}, 1", f"v_mov_b32 {vr(vT1)}, 0", f"s_lshr_b32 {sr(sA)}, {sr(sMT)}, 2", f"s_lshl_b32 {sr(sA)}, {sr(sA)}, 5",
                                  f"buffer_atomic_add {vr(vT0)}, {vr(vT1)}, {sr(S_DBG,4)}, {sr(sA)} offen sc1 untracked"])

    def publish():
        return w0only("L_c3", "0xffffffff", [f"v_mov_b32 {vr(vT0)}, 1", f"v_mul_u32_u24 {vr(vT1)}, {FST}, {vr(vL)}",
                                             f"s_mul_i32 {sr(sA)}, {sr(sB)}, {32*FST}", f"s_add_u32 {sr(sA)}, {sr(sA)}, {WS_FLG}",
                                             f"buffer_atomic_add {vr(vT0)}, {vr(vT1)}, {sr(S_WS,4)}, {sr(sA)} offen sc1 untracked"])

    a(qgroup(0, True))
    if opt.get("cpf", 1):
        a("s_getpc_b64 s[88:89]")
        a("L_pc:")
        a(f"s_lshr_b32 {sr(sA)}, s2, 3")
        a(f"s_lshl_b32 {sr(sA)}, {sr(sA)}, 2")
        a(f"s_add_u32 {sr(sA)}, {sr(sA)}, {sr(sW)}")
        a(f"s_lshl_b32 {sr(sA)}, {sr(sA)}, 9")
        a(f"v_lshl_add_u32 v8, v12, 7, {sr(sA)}")
        a("v_min_u32 v8, L_codeend-L_pc-4, v8")
        a(("vm", "CP", "global_load_dword v235, v8, s[88:89]"))
    a(f"s_lshl_b32 {sr(sFl)}, {sr(sB)}, 5")
    a(f"s_add_u32 {sr(sFl)}, {sr(sFl)}, {sr(sH)}")
    a(f"s_lshl_b32 {sr(sA)}, {sr(sFl)}, 18")
    a(f"s_add_u32 {sr(S_K)}, s74, {sr(sA)}")
    a(f"s_addc_u32 {sr(S_K+1)}, s75, 0")
    a(f"s_mov_b32 {sr(S_K+2)}, 0x40000")
    a(f"s_mov_b32 {sr(S_K+3)}, 0x20000")
    a(f"s_add_u32 {sr(S_V)}, s76, {sr(sA)}")
    a(f"s_addc_u32 {sr(S_V+1)}, s77, 0")
    a(f"s_mov_b32 {sr(S_V+2)}, 0x40000")
    a(f"s_mov_b32 {sr(S_V+3)}, 0x20000")
    a(f"s_mov_b32 {sr(S_WS)}, s86")
    a(f"s_mov_b32 {sr(S_WS+1)}, s87")
    a(f"s_mov_b32 {sr(S_WS+2)}, {WS_SIZE}")
    a(f"s_mov_b32 {sr(S_WS+3)}, 0x20000")
    a(f"s_mov_b32 {sr(S_DBG)}, s84")
    a(f"s_mov_b32 {sr(S_DBG+1)}, s85")
    a(f"s_mov_b32 {sr(S_DBG+2)}, 256")
    a(f"s_mov_b32 {sr(S_DBG+3)}, 0x20000")
    a(f"s_mov_b32 {sr(S_OUT)}, s82")
    a(f"s_mov_b32 {sr(S_OUT+1)}, s83")
    a(f"s_mov_b32 {sr(S_OUT+2)}, {1536*1024}")
    a(f"s_mov_b32 {sr(S_OUT+3)}, 0x20000")
    a(f"v_add_u32 {vr(vDmaKV)}, {sr(sWld)}, {vr(vDmaKV)}")
    a(f"s_mul_i32 {sr(sKl)}, {sr(sW)}, {4*PS}")
    if opt.get("krot"):
        a(f"s_lshr_b32 s48, s2, {opt['krot'] - 1}")
        a("s_and_b32 s48, s48, 15")
        a("s_lshl_b32 s48, s48, 14")
    a(f"v_lshlrev_b32 v9, 3, v15")
    a(f"v_lshl_add_u32 v9, v13, 6, v9")
    a(f"v_lshl_add_u32 v11, v10, 10, v9")
    a(f"v_and_b32 v8, 1, v12")
    a(f"v_lshl_add_u32 v11, v8, 8, v11")
    a(f"v_lshl_add_u32 {vr(vBE)}, v8, 5, v11")
    a(f"v_xor_b32 {vr(ET)}, 32, {vr(vBE)}")
    a(f"v_lshlrev_b32 v8, 5, v8")
    a(f"v_xor_b32 {vr(vDmaX)}, v8, {vr(vDmaX)}")
    a(f"v_mul_u32_u24 v11, {PS}, v12")
    a(f"v_add_u32 v11, v11, v9")
    a(f"s_mul_i32 {sr(sA)}, {sr(sKH)}, {8*PS+512}")
    a(f"s_add_u32 {sr(sA)}, {sr(sA)}, {KSZ}")
    a(f"v_add_u32 {vr(vVA[0])}, {sr(sA)}, v11")
    a(f"s_mul_i32 {sr(sA)}, {sr(sKH)}, {8*PS-512}")
    a(f"s_add_u32 {sr(sA)}, {sr(sA)}, {KSZ+512}")
    a(f"v_add_u32 {vr(vVB[0])}, {sr(sA)}, v11")
    a(f"v_mul_u32_u24 v11, {PS}, v13")
    a(f"v_lshl_add_u32 v11, v15, 6, v11")
    a(f"v_lshl_add_u32 v11, v12, 4, v11")
    a(f"s_mul_i32 {sr(sA)}, {sr(sKH)}, {8*PS}")
    a(f"v_add_u32 {vr(vK[0])}, {sr(sA)}, v11")
    a(f"v_lshl_add_u32 v11, v13, 6, v14")
    a(f"v_lshl_add_u32 v11, v12, 11, v11")
    a(f"s_lshl_b32 {sr(sA)}, {sr(sKH)}, 9")
    a(f"v_add_u32 v11, {sr(sA)}, v11")
    for r in range(3):
        a(f"v_add_u32 {vr(vW[r])}, {QB[r]}, v11")
    a(f"v_bfe_u32 v11, {vr(vL)}, 3, 1")
    a(f"v_mul_u32_u24 v11, {PS}, v11")
    a(f"v_and_b32 v9, 7, {vr(vL)}")
    a(f"v_lshl_add_u32 v11, v9, 6, v11")
    a(f"v_lshl_add_u32 v11, v12, 4, v11")
    a(f"s_mul_i32 {sr(sA)}, {sr(sQH)}, {12*PS}")
    a(f"v_add_u32 v11, {sr(sA)}, v11")
    for r in range(3):
        a(f"v_add_u32 {vr(vX[r])}, {QB[r] + 16384}, v11")
    for lst in (vK, vVA, vVB):
        a(f"v_add_u32 {vr(lst[1])}, {2*SLOT}, {vr(lst[0])}")
    a(f"v_lshlrev_b32 {vr(vL16)}, 4, {vr(vL)}")
    a(f"s_bfe_u32 {sr(sA)}, s2, 0x20001")
    a(f"s_lshl_b32 {sr(sA)}, {sr(sA)}, 3")
    a(f"s_bfe_u32 {sr(sBt)}, s2, 0x30003")
    a(f"s_add_u32 {sr(sMT)}, {sr(sA)}, {sr(sBt)}")
    a(f"s_and_b32 {sr(sA)}, s2, 1")
    a(f"s_lshl_b32 {sr(sA)}, {sr(sA)}, 2")
    a(f"s_lshr_b32 {sr(sC)}, s2, 6")
    a(f"s_add_u32 {sr(sNT)}, {sr(sA)}, {sr(sC)}")
    a(f"s_mul_i32 {sr(sC)}, {sr(sC)}, {opt.get('rn', 1)}")
    a(f"s_mul_i32 {sr(sBt)}, {sr(sBt)}, {opt.get('rm', 1)}")
    a(f"s_add_u32 {sr(sOff)}, {sr(sC)}, {sr(sBt)}")
    a(f"s_and_b32 {sr(sOff)}, {sr(sOff)}, 31")
    a(f"s_lshl_b32 {sr(sOffW)}, {sr(sOff)}, 15")
    a(f"s_lshl_b32 {sr(sOff)}, {sr(sOff)}, 10")
    a(f"s_lshl_b32 {sr(sA)}, {sr(sNT)}, 7")
    a(f"s_sub_u32 {sr(S_WO+2)}, 0x100000, {sr(sA)}")
    a(f"s_lshl_b32 {sr(sBt)}, {sr(sW)}, 20")
    a(f"s_add_u32 {sr(sA)}, {sr(sA)}, {sr(sBt)}")
    a(f"s_add_u32 {sr(S_WO)}, s80, {sr(sA)}")
    a(f"s_addc_u32 {sr(S_WO+1)}, s81, 0")
    a(f"s_mov_b32 {sr(S_WO+3)}, 0x20000")
    a(f"s_mul_i32 {sr(sLl)}, {sr(sW)}, 15360")
    a(f"s_add_u32 {sr(sLl)}, {sr(sLl)}, {QEX}")
    a(f"s_lshl_b32 {sr(sLb)}, {sr(sW)}, 13")
    a(f"s_lshl_b32 {sr(sOwn)}, {sr(sMT)}, 3")
    a(f"s_add_u32 {sr(sOwn)}, {sr(sOwn)}, {sr(sNT)}")
    a(f"s_mul_i32 {sr(sOwn)}, {sr(sOwn)}, {FST}")
    a(f"s_add_u32 {sr(sOwn)}, {sr(sOwn)}, {WS_FLG}")
    a(f"s_mov_b32 {sr(sMask)}, 0x40004000")
    a(f"s_mul_i32 {sr(sBt)}, {sr(sW)}, 12288")
    a(f"s_add_u32 {sr(sBt)}, {sr(sBt)}, {QEX}")
    a(f"v_add_u32 v15, {sr(sBt)}, {vr(vL16)}")
    a(f"s_mul_i32 {sr(sBt)}, {sr(sQH)}, 24576")
    a(f"s_add_u32 {sr(sBt)}, {sr(sBt)}, {QEX}")
    a(f"v_add_u32 v14, {sr(sBt)}, {vr(vL16)}")
    a(f"s_mov_b32 {sr(sC)}, {hex(f32bits(SCALE))}")
    a(f"s_mov_b32 {sr(sBt)}, {sr(sC)}")
    K, V = True, False

    def tlbtouch(r):
        return [f"s_mul_i32 {sr(sA)}, {sr(sB)}, 12", f"s_mul_i32 {sr(sD)}, {sr(sMT)}, 3",
                f"v_min_u32 {vr(r)}, 11, {vr(vL)}", f"v_add_u32 {vr(r)}, {sr(sA)}, {vr(r)}",
                f"v_mov_b32 {vr(r+1)}, {sr(sD)}", f"v_cmp_lt_u32 vcc, 31, {vr(vL)}", f"s_mov_b32 {sr(sA)}, {TS}", "s_nop 0",
                f"v_cndmask_b32 {vr(r)}, {vr(r)}, {vr(r+1)}, vcc", f"v_mul_lo_u32 {vr(r)}, {vr(r)}, {sr(sA)}",
                f"s_mov_b32 {sr(sA)}, 131072", f"v_mov_b32 {vr(r+1)}, 0",
                ("vm", "TL", f"buffer_load_dword {vr(r+2)}, {vr(r)}, {sr(S_WS,4)}, {sr(sA)} offen"),
                ("vm", "TL", f"buffer_load_dword {vr(r+2)}, {vr(r+1)}, {sr(S_DBG,4)}, 0 offen sc1"),
                ("vm", "TL", f"buffer_load_dword {vr(r+2)}, {vr(r+1)}, {sr(S_OUT,4)}, 0 offen"),
                ("vm", "TL", f"buffer_load_dword {vr(r+2)}, {vr(r+1)}, {sr(S_WO,4)}, 0 offen")]
    if opt.get("tlb") == 0:
        a(tlbtouch(208))
    plan_id = opt.get("plan", 3)
    if plan_id == 4:
        a(kvpieces(K, 0) + kvpieces(V, 0))
    a(qgroup(1, True))

    def fs(r, off, n=4):
        return ar(off, n) if r == 0 else vr(OK + off, n)

    def xf(qt, ks):
        return (qt * 2 + ks) * 4

    def wf(t, ks):
        return 48 + (t * 2 + ks) * 4

    def qreads(s):
        r = s & 1
        b = s % 3
        out = []
        for ks in range(2):
            for t in range(4):
                for i in range(2):
                    out.append(("ds", f"F{s}", f"ds_read_b64_tr_b16 {fs(r, wf(t,ks)+2*i, 2)}, {vr(vW[b])} offset:{(8*ks+i)*1024 + (t>>1)*256 + (t&1)*8}"))
            for qt in range(6):
                out.append(("ds", f"F{s}", f"ds_read_b128 {fs(r, xf(qt,ks))}, {vr(vX[b])} offset:{qt*2*PS + ks*512}"))
        return out

    def qacc(qt, t):
        return QACC + (qt * 4 + t) * 4

    def qmfmas(s):
        r = s & 1
        out = []
        if s == 7:
            order = [(ks, t, qt) for qt in range(6) for t in range(4) for ks in range(2)]
        else:
            order = [(ks, t, qt) for ks in range(2) for t in range(4) for qt in range(6)]
        for ks, t, qt in order:
            acc = vr(qacc(qt, t), 4)
            c = "0" if (s == 0 and ks == 0) else acc
            out.append(f"{MF} {acc}, {fs(r, wf(t,ks))}, {fs(r, xf(qt,ks))}, {c}")
        return out

    def kf(kt, ks):
        return KF + (kt * 4 + ks) * 4

    def qf(qt, ks):
        return QF + (qt * 4 + ks) * 4

    def kread(g, kt, ks):
        sl = g % 3
        return ("ds", f"k{g}", f"ds_read_b128 {ar(kf(kt,ks),4)}, {vr(vK[sl>>1])} offset:{(sl&1)*SLOT + kt*4*PS + ks*256}")

    def vread(g, acc, i):
        sl = g % 3
        areg = (vVA if acc < 4 else vVB)[sl >> 1]
        return ("ds", f"v{g}", f"ds_read_b64_tr_b16 {ar(VF+4*acc+2*i,2)}, {vr(areg)} offset:{(sl&1)*SLOT + 4*i*PS + ((acc&3)>>1)*256 + (acc&1)*32}")

    def qread(qt, ks):
        return ("ds", f"q{qt>>1}", f"ds_read_b128 {ar(qf(qt,ks),4)}, v14 offset:{(ks>>1)*12288 + (qt*2 + (ks&1))*1024}")

    def fin(qt, pk):
        acc = qacc(qt, 0)
        if pk:
            out = [f"v_pk_mul_f32 {vr(acc+r,2)}, {vr(acc+r,2)}, {sr(sBt,2)}" for r in range(0, 16, 2)]
        else:
            out = [f"v_mul_f32 {vr(acc+r)}, {sr(sC)}, {vr(acc+r)}" for r in range(16)]
        out += [f"v_cvt_pk_bf16_f32 {vr(acc+e)}, {vr(acc+2*e)}, {vr(acc+2*e+1)}" for e in range(8)]
        out += [("ds", f"w{qt}", f"ds_write_b128 v15, {vr(acc+4*ksl,4)} offset:{(qt*2+ksl)*1024}") for ksl in range(2)]
        return out

    qkorder = [(q, kt, ks) for q in range(2) for kt in range(2) for ks in range(4)]

    def qk(j, first=False):
        out = []
        for q, kt, ks in qkorder:
            d = vr(SB + 16 * j + 8 * q + 4 * kt, 4)
            c = ("0" if first else vr(CIr[j] + 4 * q, 4)) if ks == 0 else d
            out.append(f"{MF} {d}, {ar(kf(kt,ks),4)}, {ar(qf(2*j+q,ks),4)}, {c}")
        return out

    def oacc(qt, acc):
        if acc < 4:
            return vr(OK + (qt * 4 + acc) * 4, 4)
        return ar(OS + (qt * 4 + acc - 4) * 4, 4)

    def pv(j, first=False):
        out = []
        for acc in range(8):
            for q in range(2):
                d = oacc(2 * j + q, acc)
                out.append(f"{MF} {d}, {ar(VF+4*acc,4)}, {vr(Preg[j]+4*q,4)}, {'0' if first else d}")
        for q in range(2):
            d = vr(LA + 4 * (2 * j + q), 4)
            out.append(f"{MF} {d}, {vr(ONES,4)}, {vr(Preg[j]+4*q,4)}, {'0' if first else d}")
        return out

    a(("wait", ["Q0"], None))
    a("s_barrier")
    a(stamp())
    a(qreads(0))
    a(qgroup(2, True))
    plans = {
        0: {4: qgroup(7) + kvpieces(K, 0), 5: kvpieces(V, 0) + kvpieces(K, 1), 6: kvpieces(V, 1), 7: kvpieces(K, 2)},
        1: {2: qgroup(5) + kvpieces(K, 0) + kvpieces(V, 0), 5: kvpieces(K, 1), 6: kvpieces(V, 1), 7: kvpieces(K, 2)},
        2: {0: qgroup(3) + kvpieces(K, 0) + kvpieces(V, 0), 5: kvpieces(K, 1), 6: kvpieces(V, 1), 7: kvpieces(K, 2)},
        3: {4: qgroup(7) + kvpieces(K, 0) + kvpieces(V, 0), 5: kvpieces(K, 1), 6: kvpieces(V, 1), 7: kvpieces(K, 2)},
        4: {5: kvpieces(K, 1), 6: kvpieces(V, 1), 7: kvpieces(K, 2)},
        5: {4: qgroup(7) + kvpieces(K, 0), 5: kvpieces(V, 0), 6: kvpieces(K, 1), 7: kvpieces(V, 1), 8: kvpieces(K, 2)},
    }
    plan = {s: qgroup(s + 3) for s in range(5)}
    plan.update(plans[plan_id])
    pkm = opt.get("pkm", 1)
    qd = opt.get("qdiag")
    for s in range(8):
        mf = qmfmas(s)
        fill = {}
        if qd:
            a("s_memtime s[100:101]")
        a(("wait", [f"Q{s+1}"] if s < 7 else ["K0"], "all" if qd else [f"F{s}"]))
        a("s_barrier")
        if qd:
            a([f"v_writelane_b32 v239, s100, {s}", f"v_writelane_b32 v239, s88, {16+s}", "s_memtime s[88:89]"])
        if s < 7:
            spread(fill, qreads(s + 1), 0, 42)
        if s == 1:
            fill[1] += [f"v_mov_b32 {vr(ONES+r)}, 0x3f803f80" for r in range(4)]
        if s == opt.get("wpf", -1):
            nq = 10 if s < 5 else 0
            plan[s] = plan[s][:nq] + [[f"s_lshl_b32 {sr(sA)}, s2, 14", f"s_add_u32 {sr(sA)}, {sr(sA)}, {sr(sWld)}",
                                       f"v_lshl_add_u32 v237, {vr(vL)}, 6, {sr(sA)}",
                                       ("vm", "WP", "global_load_dword v237, v237, s[80:81]")]] + plan[s][nq:]
        spread(fill, plan[s], 0, 48)
        if s == 7:
            spread(fill, [kread(0, kt, ks) for kt in range(2) for ks in range(4)], 0, 12)
            for t in range(4):
                spread(fill, fin(t, pkm >= 2), 8 * (t + 2), 8 * (t + 3))
            fill[34] += [("wait", None, ["w1"]), "s_barrier"]
            spread(fill, [qread(qt, ks) for qt in range(2) for ks in range(4)], 35, 43)
        a.spine(mf, fill)
    a(stamp())
    fill = {}
    spread(fill, fin(4, pkm >= 1) + fin(5, pkm >= 1), 0, 14)
    if 8 in plan:
        spread(fill, plan[8], 1, 16)
    a(("wait", None, ["k0", "q0"]))
    a.spine(qk(0, True), fill)
    if qd:
        a("s_memtime s[100:101]")
    a(("wait", None, "all" if qd else ["w5"]))
    a("s_barrier")
    if qd:
        a(["v_writelane_b32 v239, s100, 8", "v_writelane_b32 v239, s88, 24", "s_memtime s[88:89]", "s_waitcnt lgkmcnt(0)",
           "v_writelane_b32 v239, s88, 25", f"s_lshl_b32 {sr(sA)}, s2, 2", f"s_add_u32 {sr(sA)}, {sr(sA)}, {sr(sW)}",
           f"s_lshl_b32 {sr(sA)}, {sr(sA)}, 8", f"s_add_u32 {sr(sA)}, {sr(sA)}, {WS_DIAG + (2<<20)}",
           f"v_lshlrev_b32 v238, 2, {vr(vL)}", f"buffer_store_dword v239, v238, {sr(S_WS,4)}, {sr(sA)} offen untracked"])
    a([qread(qt, ks) for qt in range(2, 6) for ks in range(4)])
    a(f"v_mov_b32 {vr(vBO)}, {vr(ET)}")
    a(stamp())

    def firstmax(j):
        s0 = SB + 16 * j
        m = [vMx, vT1]
        t = [vT0, ET]
        out = []
        for step in range(4):
            for q in range(2):
                s = s0 + 8 * q
                if step == 0:
                    out.append(f"v_max3_f32 {vr(m[q])}, {vr(s)}, {vr(s+1)}, {vr(s+2)}")
                elif step < 3:
                    out.append(f"v_max3_f32 {vr(m[q])}, {vr(m[q])}, {vr(s+2*step+1)}, {vr(s+2*step+2)}")
                else:
                    out.append(f"v_max_f32 {vr(m[q])}, {vr(m[q])}, {vr(s+7)}")
        for op in ("v_permlane32_swap_b32", "v_permlane16_swap_b32"):
            out += [f"v_mov_b32 {vr(t[q])}, {vr(m[q])}" for q in range(2)]
            out += ["s_nop 0"]
            out += [f"{op} {vr(t[q])}, {vr(m[q])}" for q in range(2)]
            out += ["s_nop 0"]
            out += [f"v_max_f32 {vr(m[q])}, {vr(m[q])}, {vr(t[q])}" for q in range(2)]
        out += [f"v_sub_f32 {vr(CIr[j]+4*q)}, 0xc1000000, {vr(m[q])}" for q in range(2)]
        return out

    def softmax_first(j):
        s = SB + 16 * j
        P = Preg[j]
        out = []
        for e in range(16):
            out.append(f"v_add_f32 {vr(s+e)}, {vr(s+e)}, {vr(CIr[j]+4*(e>>3))}")
        for q in range(2):
            out += [f"v_mov_b32 {vr(CIr[j]+4*q+r)}, {vr(CIr[j]+4*q)}" for r in range(1, 4)]
        for e in range(16):
            out.append(f"v_exp_f32 {vr(s+e)}, {vr(s+e)}")
            if e >= 2 and e % 2 == 0:
                out.append(f"v_cvt_pk_bf16_f32 {vr(P+e//2-1)}, {vr(s+e-2)}, {vr(s+e-1)}")
        out.append("s_nop 0")
        out.append(f"v_cvt_pk_bf16_f32 {vr(P+7)}, {vr(s+14)}, {vr(s+15)}")
        return out

    def softmax_lin(j):
        s = SB + 16 * j
        P = Preg[j]
        out = []
        for e in range(16):
            out.append(f"v_exp_f32 {vr(ET+(e&3))}, {vr(s+e)}")
            if e >= 2 and e % 2 == 0:
                out.append(f"v_cvt_pk_bf16_f32 {vr(P+e//2-1)}, {vr(ET+((e-2)&3))}, {vr(ET+((e-1)&3))}")
            if e == 7:
                out.append(f"v_or3_b32 {vr(vMx)}, {vr(P)}, {vr(P+1)}, {vr(P+2)}")
            if e == 11:
                out.append(f"v_or3_b32 {vr(vMx)}, {vr(vMx)}, {vr(P+3)}, {vr(P+4)}")
        out.append(f"v_or3_b32 {vr(vMx)}, {vr(vMx)}, {vr(P+5)}, {vr(P+6)}")
        out.append(f"v_cvt_pk_bf16_f32 {vr(P+7)}, {vr(ET+2)}, {vr(ET+3)}")
        out.append(f"v_bitop3_b32 {vr(vMx)}, {vr(vMx)}, {vr(P+7)}, {sr(sMask)} bitop3:0xa8")
        out.append(f"v_cmp_ne_u32 vcc, 0, {vr(vMx)}")
        return out

    stubs = []

    def chk(i, j):
        stubs.append((i, j))
        return [f"s_cbranch_vccnz L_st{i}_{j}", f"L_bk{i}_{j}:"]

    NRK = 25
    pw = {0: "", 1: " nt"}[opt.get("pw", 0)]

    def wreg(f, n=4, o=0):
        if f >= 4 * NRK:
            f -= 4 * NRK
        if f < 40:
            return ar(96 + 4 * f + o, n)
        if f < 64:
            return ar(4 * (f - 40) + o, n)
        return vr(112 + 4 * (f - 64) + o, n)

    LOCS = {f"A{k}": (sLl, k * 4096) for k in range(3)}
    for k in range(6):
        LOCS[f"B{k}"] = (sLb, [1, 0, 2][k // 2] * SLOT + (k & 1) * 4096)
    wloc = {}
    locbusy = {}
    dnext = [0]
    rnext = [0]

    def D(loc, solo=False):
        n = dnext[0]
        dnext[0] += 1
        assert n < 32
        wloc[n] = loc
        sb, off = LOCS[loc]
        items = []
        for p in range(4):
            pre = []
            if p == 0:
                if loc in locbusy:
                    assert locbusy[loc] < rnext[0], (loc, n)
                    pre.append(("wait", None, [f"t{locbusy[loc]}"]))
                pre += [f"s_add_u32 m0, {sr(sb)}, {off}", f"s_mov_b32 {sr(sD)}, {sr(sOffW)}"]
            elif solo:
                pre += [f"s_add_u32 m0, {sr(sb)}, {off}", "s_nop 0"]
            post = [f"s_add_u32 {sr(sD)}, {sr(sD)}, 7168"] if p < 3 else \
                   [f"s_add_u32 {sr(sOffW)}, {sr(sOffW)}, 32768", f"s_and_b32 {sr(sOffW)}, {sr(sOffW)}, 0xfffff"]
            items.append(pre + [("vm", f"W{n}", f"buffer_load_dwordx4 {vr(vDmaX)}, {sr(S_WO,4)}, {sr(sD)} offen offset:{p*1024}{pw} lds")] + post)
        locbusy[loc] = n
        return items

    def Rd():
        n = rnext[0]
        rnext[0] += 1
        sb, off = LOCS[wloc[n]]
        items = [[f"s_add_u32 {sr(sA)}, {sr(sb)}, {off}", f"v_add_u32 {vr(vTa)}, {sr(sA)}, {vr(vBE)}",
                  f"v_add_u32 {vr(vTb)}, {sr(sA)}, {vr(vBO)}", ("wait", [f"W{n}"], None)]]
        for t in range(4):
            for i2 in range(2):
                items.append(("ds", f"t{n}", f"ds_read_b64_tr_b16 {wreg(4*n+t, 2, 2*i2)}, {vr(vTb if t & 1 else vTa)} offset:{2*i2*1024 + (t>>1)*512}"))
        return items

    vSO, vRO, vSM, vRM = 5, 6, 7, 8
    MLo = [240, 244, 240]
    MLp, GF = 248, 252
    RB = [112, 144, 112]
    EXI = [0, 0, 0]

    def send(j):
        o = MLo[j]
        out = [f"v_sub_f32 {vr(o+q)}, 0, {vr(CIr[j]+4*q)}" for q in range(2)]
        out += [f"v_mov_b32 {vr(o+2+q)}, {vr(LA+4*(2*j+q))}" for q in range(2)]
        out += [("ds", f"s{j}", f"ds_write_b128 {vr(vSM)}, {vr(o,4)} offset:{EXI[j]}")]
        out += [("ds", f"s{j}", f"ds_write_b128 {vr(vSO)}, {ar(OS+32*j+4*k,4)} offset:{EXI[j]+k*1024}") for k in range(8)]
        return out

    def recv(j):
        out = [("ds", f"m{j}", f"ds_read_b128 {vr(MLp,4)}, {vr(vRM)} offset:{EXI[j]}")]
        out += [("ds", f"r{j}_{k//2}", f"ds_read_b128 {vr(RB[j]+4*k,4)}, {vr(vRO)} offset:{EXI[j]+k*1024}") for k in range(8)]
        return out

    def combine(j):
        o = MLo[j]
        out = [("wait", None, [f"m{j}"])]
        t = [vMx, vT0]
        out += [f"v_max_f32 {vr(t[q])}, {vr(o+q)}, {vr(MLp+q)}" for q in range(2)]
        out += [f"v_sub_f32 {vr(GF+q)}, {vr(o+q)}, {vr(t[q])}" for q in range(2)]
        out += [f"v_sub_f32 {vr(GF+2+q)}, {vr(MLp+q)}, {vr(t[q])}" for q in range(2)]
        out += [f"v_exp_f32 {vr(GF+k)}, {vr(GF+k)}" for k in range(4)]
        out += [f"v_mul_f32 {vr(t[q])}, {vr(GF+q)}, {vr(o+2+q)}" for q in range(2)]
        out += [f"v_fmac_f32 {vr(t[q])}, {vr(GF+2+q)}, {vr(MLp+2+q)}" for q in range(2)]
        out += [f"v_rcp_f32 {vr(t[q])}, {vr(t[q])}" for q in range(2)]
        out += ["s_nop 0"]
        out += [f"v_mul_f32 {vr(GF+k)}, {vr(GF+k)}, {vr(t[k&1])}" for k in range(4)]
        for q in range(2):
            for jj in range(2):
                ob = OK + (2 * j + q) * 16 + jj * 8
                rb = RB[j] + q * 16 + jj * 8
                out.append(("wait", None, [f"r{j}_{2*q+jj}"]))
                for e in range(0, 8, 2):
                    out.append(f"v_pk_mul_f32 {vr(ob+e,2)}, {vr(ob+e,2)}, {vr(GF,2)} op_sel:[0,{q}] op_sel_hi:[1,{q}]")
                for e in range(0, 8, 2):
                    out.append(f"v_pk_fma_f32 {vr(ob+e,2)}, {vr(rb+e,2)}, {vr(GF+2,2)}, {vr(ob+e,2)} op_sel:[0,{q},0] op_sel_hi:[1,{q},1]")
                for e in range(4):
                    out.append(f"v_cvt_pk_bf16_f32 {vr(ob+e)}, {vr(ob+2*e)}, {vr(ob+2*e+1)}")
                out.append(("vm", "ST", f"buffer_store_dwordx4 {vr(ob,4)}, {vr(vL16)}, {sr(S_WS,4)}, {sr(sC)} offen offset:{jj*1024}{'' if opt.get('xs') else ' sc1'}"))
            out.append(f"s_add_u32 {sr(sC)}, {sr(sC)}, {TS}")
        return out

    def mix(main, extra, start=0):
        if opt.get("mixend") and start > 0:
            return main + extra
        out = []
        n, m = len(main) - start, len(extra)
        k = 0
        for i, x in enumerate(main):
            out.append(x)
            if i >= start:
                while k < m and k * n < (i - start + 1) * m:
                    out.append(extra[k]); k += 1
        out += extra[k:]
        return out

    G = 34
    itd = opt.get("itdiag")
    h0 = opt.get("h0", 2)
    dpos = [(0, 32), (1, 7), (1, 21), (1, 31), (2, 5), (2, 17), (2, 27), (3, 5)]
    fills = {(i, j): {g: [] for g in range(G)} for i in range(17) for j in range(3)}

    def F(i, j, g):
        if j >= 3:
            i, j = i + 1, j - 3
        return fills[(i, j)][g]

    for i in range(16):
        for j in range(3):
            f = fills[(i, j)]
            s = SB + 16 * j
            P = Preg[j]
            if i == 0 or (i, j) == (15, 2):
                continue
            for e in range(16):
                f[2 * e].append(f"v_exp_f32 {vr(ET+(e&3))}, {vr(s+e)}")
                if e & 1:
                    f[2 * e + 1].append(f"v_cvt_pk_bf16_f32 {vr(P+e//2)}, {vr(ET+((e-1)&3))}, {vr(ET+(e&3))}")
            f[13].append(f"v_or3_b32 {vr(vMx)}, {vr(P)}, {vr(P+1)}, {vr(P+2)}")
            f[21].append(f"v_or3_b32 {vr(vMx)}, {vr(vMx)}, {vr(P+3)}, {vr(P+4)}")
            f[29].append(f"v_or3_b32 {vr(vMx)}, {vr(vMx)}, {vr(P+5)}, {vr(P+6)}")
            f[32].append(f"v_bitop3_b32 {vr(vMx)}, {vr(vMx)}, {vr(P+7)}, {sr(sMask)} bitop3:0xa8")
            f[32].append(f"v_cmp_ne_u32 vcc, 0, {vr(vMx)}")
            if opt.get("cg", 1) < 0:
                f[32] += chk(i, j)
            elif (i, j) == (15, 1) or opt.get("cg", 1) == 0:
                f[33] += chk(i, j)
            else:
                F(i, j + 1, opt.get("cg", 1)).extend(chk(i, j))
    for i in range(16):
        kbar = opt.get("kbar") and 0 < i < 15
        need = [f"V{i}"] + ([f"K{i+1}"] if (i < 15 and not kbar) else [])
        if kbar:
            fills[(i, 1)][8] += [("wait", [f"K{i+1}"], None), "s_barrier"]
        bar = [("wait", need, None), "s_barrier"]
        if itd:
            bar = ["s_memtime s[100:101]", ("wait", need, "all"), "s_barrier", f"v_writelane_b32 v15, s100, {i}",
                   f"v_writelane_b32 v15, s88, {16+i}", "s_memtime s[88:89]"]
        bg = 15 if i == 0 else 16
        fills[(i, 0)][bg] += bar
        if i == 0:
            vpos = [(1, n // 2) for n in range(16)]
        else:
            vpos = [(0, g) for g in (17, 17, 19, 21, 23, 25, 25, 27, 29, 31, 33, 33)] + [(1, 1), (1, 3), (1, 5), (1, 5)]
        for n in range(16):
            jj, g = vpos[n]
            F(i, jj, g).insert(0, vread(i, n // 2, n % 2))
        fills[(i, 1)][15].append(("wait", None, [f"v{i}"]))
        if i < 15:
            for n in range(8):
                g = [9, 9, 11, 13, 15, 17, 17, 19][n]
                F(i, 1, g).insert(0, kread(i + 1, n // 4, n % 4))
            fills[(i, 1)][33].append(("wait", None, [f"k{i+1}"]))
        if opt.get("dup") and 0 < i < 14:
            ex = [vread(i, n // 2, n % 2) for n in range(16)] + [kread(i + 1, n // 4, n % 4) for n in range(8)]
            import re as _re
            pos = [(1, 21), (1, 23), (1, 25), (1, 25), (1, 27), (1, 29), (1, 31)] + [(2, g) for g in range(1, 34, 2)]
            for n, e in enumerate(ex):
                w_ = 2 if "tr" in e[2] else 4
                t_ = _re.sub(r"a\[\d+:\d+\]", vr(240 + 4 * (n % 4), w_), e[2])
                F(i, *pos[n]).insert(0, ("ds", "dup", t_))
        dm = (kvpieces(V, i + 2) if i + 2 < 16 else []) + (kvpieces(K, i + 3) if i + 3 < 16 else [])
        if opt.get("nodma"):
            dm = [[x[0], x[1], (x[2][0], x[2][1], x[2][2].replace(sr(sG), "0"))] for x in dm]
        for n, it in enumerate(dm):
            jj, g = dpos[n]
            if i == 0 and jj == 0:
                jj, g = 1, 2
            pre = it[:2] if n % 4 == 0 else it[:1]
            F(i, jj, g - 1).extend(pre)
            F(i, jj, g).insert(0, it[2])
            if opt.get("cap"):
                F(i, jj, g).insert(0, ("cap", opt["cap"] - 1))
    F(9, 2, 21).extend([f"s_lshl_b32 {sr(sBt)}, {sr(sW)}, 15", f"s_mul_i32 {sr(sA)}, {sr(sMT)}, {3*TS}", f"s_add_u32 {sr(sA)}, {sr(sA)}, {sr(sBt)}",
                        f"s_add_u32 {sr(S_X)}, {sr(S_WS)}, {sr(sA)}", f"s_addc_u32 {sr(S_X+1)}, {sr(S_WS+1)}, 0"])
    F(9, 2, 25).extend([f"s_mov_b32 {sr(S_X+2)}, {2*TS+32768}"])
    F(11, 2, 9).extend([f"s_lshl_b32 {sr(sC)}, {sr(sB)}, 1", f"s_add_u32 {sr(sC)}, {sr(sC)}, {sr(sQH)}",
                        f"s_mul_i32 {sr(sC)}, {sr(sC)}, {6*TS}", f"s_lshl_b32 {sr(sBt)}, {sr(sH)}, 12"])
    F(11, 2, 13).extend([f"s_add_u32 {sr(sC)}, {sr(sC)}, {sr(sBt)}", f"s_lshl_b32 {sr(sBt)}, {sr(sKH)}, 11",
                         f"s_add_u32 {sr(sC)}, {sr(sC)}, {sr(sBt)}"])
    wsched = [(13, 2, 1, 33, "D:A0"), (14, 0, 1, 33, "D:A1"), (14, 1, 1, 16, "D:A2"), (14, 1, 17, 33, "D:B0"),
              (14, 2, 1, 15, "D:B1"), (14, 2, 16, 24, "R"), (14, 2, 25, 33, "R"),
              (15, 0, 1, 8, "D:A0"), (15, 0, 8, 15, "D:A1"), (15, 0, 17, 25, "R"), (15, 0, 25, 33, "R"),
              (15, 1, 2, 8, "D:A2"), (15, 1, 8, 14, "D:B0"), (15, 1, 14, 20, "R"), (15, 1, 20, 26, "R"), (15, 1, 26, 33, "R")]
    c0 = opt.get("c0", 1)
    F(c0, 2, 13).extend(clearown())
    F(c0 + 2, 2, 13).extend(sigclear())
    F(10, 2, 9).extend([f"s_lshl_b32 {sr(sFl)}, {sr(sB)}, 5", f"v_mov_b32 v245, 0",
                        ("vm", "FL", f"buffer_load_dword v244, v245, {sr(S_DBG,4)}, {sr(sFl)} offen sc1")])
    F(12, 2, 9).extend([("wait", ["FL"], None), "v_cmp_gt_u32 vcc, 32, v244"])
    F(12, 2, 13).extend(["s_cbranch_vccnz L_poll1", "L_poll1_ok:"])
    if opt.get("tlb", 0) > 0:
        F(opt["tlb"], 2, 9).extend(tlbtouch(240))
    wsd = {}
    for e in wsched:
        wsd.setdefault((e[0], e[1]), []).append(e[2:])
    F(15, 1, 7).extend([f"s_lshl_b32 {sr(sA)}, {sr(sW)}, 13", f"s_add_u32 {sr(sA)}, {sr(sA)}, {2*SLOT}",
                        f"v_add_u32 {vr(vSO)}, {sr(sA)}, {vr(vL16)}"])
    F(15, 1, 9).extend([f"s_xor_b32 {sr(sBt)}, {sr(sW)}, 1", f"s_lshl_b32 {sr(sA)}, {sr(sBt)}, 13", f"s_add_u32 {sr(sA)}, {sr(sA)}, {2*SLOT}",
                        f"v_add_u32 {vr(vRO)}, {sr(sA)}, {vr(vL16)}"])
    F(15, 1, 11).extend([f"v_and_b32 {vr(vRM)}, 0xff, {vr(vL16)}", f"s_lshl_b32 {sr(sA)}, {sr(sW)}, 8", f"s_add_u32 {sr(sA)}, {sr(sA)}, {2*SLOT+32768}",
                         f"v_add_u32 {vr(vSM)}, {sr(sA)}, {vr(vRM)}"])
    F(15, 1, 13).extend([f"s_lshl_b32 {sr(sA)}, {sr(sBt)}, 8", f"s_add_u32 {sr(sA)}, {sr(sA)}, {2*SLOT+32768}",
                         f"v_add_u32 {vr(vRM)}, {sr(sA)}, {vr(vRM)}"])

    for i in range(16):
        for j in range(3):
            f = fills[(i, j)]
            jn, jp = (j + 1) % 3, (j + 2) % 3
            if (i, j) == (0, 0):
                a(firstmax(0))
                a(("wait", None, ["q1"]))
                bar = f[15]; f[15] = []
                spread(f, softmax_first(0), 0, 16)
                f[15] += bar
                a.spine(qk(1, True), f)
                a(("wait", None, ["q2"]))
                continue
            if (i, j) == (15, 2):
                spread(f, softmax_lin(2), 0, 18)
                spread(f, send(0), 4, 17)
                spread(f, D("B1") + D("A0") + D("A1"), 0, 12)
                spread(f, Rd(), 12, 18)
                a.spine(pv(1), f)
                continue
            if i == 0:
                tail = f[33]; f[33] = []
                w15 = [x for x in f[15] if isinstance(x, tuple) and x[0] == "wait"]
                f[15] = [x for x in f[15] if x not in w15]
                spread(f, firstmax(j) + softmax_first(j), 0, 34)
                f[15] += w15
                f[33] += tail
            for g0, g1, op in wsd.get((i, j), []):
                spread(f, Rd() if op == "R" else D(op[2:]), g0, g1)
            mf = qk(jn, first=(i == 0 and j < 2)) + pv(jp, first=(i == 0 or (i == 1 and j == 0)))
            a.spine(mf, f)
    a(stamp())
    a(chk(15, 2))
    if itd:
        a(["s_waitcnt lgkmcnt(0)", "v_writelane_b32 v15, s88, 32", f"s_lshl_b32 {sr(sA)}, s2, 2", f"s_add_u32 {sr(sA)}, {sr(sA)}, {sr(sW)}",
           f"s_lshl_b32 {sr(sA)}, {sr(sA)}, 8", f"s_add_u32 {sr(sA)}, {sr(sA)}, {WS_DIAG + (2<<20)}",
           f"v_lshlrev_b32 v2, 2, {vr(vL)}", f"buffer_store_dword v15, v2, {sr(S_WS,4)}, {sr(sA)} offen untracked"])
    a(("wait", None, ["s0"]))
    a("s_barrier")
    f = {}
    a([f"v_subrev_u32 {vr(r)}, {2*SLOT}, {vr(r)}" for r in (vSO, vSM)])
    spread(f, recv(0), 0, 5)
    spread(f, send(1), 4, 18)
    spread(f, D("A2"), 1, 8)
    a.spine(pv(2), f)
    e2 = (lambda: stamp(True)) if opt.get("tdiag") == 2 else (lambda: [])
    a(e2())
    a(mix(combine(0), Rd() + Rd() + D("B0") + Rd() + D("B1"), 4))
    a([f"v_subrev_u32 {vr(r)}, {2*SLOT}, {vr(r)}" for r in (vRO, vRM)])
    a([f"v_add_u32 {vr(r)}, {2*SLOT}, {vr(r)}" for r in (vSO, vSM)])
    a(e2())
    a(("wait", None, ["s1"]))
    a("s_barrier")
    a(recv(1))
    s2 = send(2)
    a(s2[:5])
    a(mix(mix(combine(1), s2[5:]), D("A0") + Rd() + Rd() + D("A1"), 2))
    a([f"v_add_u32 {vr(r)}, {2*SLOT}, {vr(r)}" for r in (vRO, vRM)])
    a(e2())
    a(("wait", None, ["s2"]))
    a("s_barrier")
    a(e2())
    a(recv(2))
    a(mix(combine(2), D("A2") + D("B2"), 2))
    a(stamp())
    a(D("B3"))
    a(Rd() + Rd())
    a(("wait", ["ST"], None))
    a("s_barrier")
    a(publish())
    a(stamp())
    free = ["B0", "B1", "B4", "B5"]
    npre = opt.get("npre", 24)

    def wstep(dlim):
        out = []
        if dnext[0] < dlim and free:
            out += D(free.pop(0))
        if rnext[0] < NRK and rnext[0] < dnext[0] and (not free or dnext[0] - rnext[0] >= 4 or dnext[0] == 32):
            loc = wloc[rnext[0]]
            out += Rd()
            free.append(loc)
        return out
    while dnext[0] < npre:
        a(wstep(npre))
    ACC = 16
    a([f"v_add_u32 v{VO[t]}, {t*TS}, {vr(vL16)}" for t in (1, 2)])
    a("v_mov_b32 v7, 0")
    a(stamp())
    if opt.get("poll1w"):
        a(f"s_cmp_lg_u32 {sr(sW)}, 0")
        a("s_cbranch_scc1 L_poll2_ok")
    a("s_mov_b32 s13, 0x100000")
    a("L_poll2:")
    a(f"buffer_load_dword v8, v7, {sr(S_WS,4)}, {sr(sOwn)} offen sc1 untracked")
    a("s_waitcnt vmcnt(0)")
    a("v_cmp_gt_u32 vcc, 32, v8")
    a("s_cbranch_vccz L_poll2_ok")
    a("s_sub_u32 s13, s13, 1")
    a("s_cbranch_scc1 L_poll2_ok")
    a(f"s_sleep {opt.get('slp', 4)}")
    a("s_branch L_poll2")
    a("L_poll2_ok:")
    if opt.get("poll1w"):
        a("s_barrier")
    a(stamp())
    D_ = opt.get("oD", 3)
    RO = 64

    def oload(j, q):
        b = RO + 12 * (j % D_)
        out = [("vm", f"O{j}_{q}", f"buffer_load_dwordx4 {vr(b+4*q,4)}, v{VO[q]}, {sr(S_X,4)}, {sr(sOff)} offen{pol}")]
        if q == 2:
            out += [f"s_add_u32 {sr(sOff)}, {sr(sOff)}, 1024", f"s_and_b32 {sr(sOff)}, {sr(sOff)}, 0x7fff"]
        return out
    for j in range(D_):
        for q in range(3):
            a(oload(j, q))
    for j in range(32):
        b = RO + 12 * (j % D_)
        if rnext[0] < NRK or dnext[0] < 32:
            rd = wstep(32) if j % opt.get("wev", 1) == 0 else []
        else:
            rd = Rd() if (rnext[0] < 32 and rnext[0] - NRK < j) else []
        assert rnext[0] > j
        npq = -(-len(rd) // 9)
        for q in range(3):
            a(("wait", [f"O{j}_{q}"], [f"t{j}"]))
            for t in range(4):
                acc = vr(ACC + (q * 4 + t) * 4, 4)
                a(f"{MF} {acc}, {wreg(4*j+t)}, {vr(b+4*q,4)}, {'0' if j == 0 else acc}")
                if t < 3:
                    for _ in range(npq):
                        if rd:
                            a(rd.pop(0))
            if j + D_ < 32:
                a(oload(j + D_, q))
    a(stamp())
    a(f"v_add_u32 v3, {sr(sLl)}, {vr(vL16)}")
    a(f"s_lshl_b32 {sr(sA)}, {sr(sW)}, 10")
    a(f"s_add_u32 {sr(sA)}, {sr(sA)}, {QEX}")
    a(f"v_add_u32 v4, {sr(sA)}, {vr(vL16)}")
    a(f"v_and_b32 v5, 15, {vr(vL)}")
    a(f"v_lshlrev_b32 v5, 10, v5")
    a(f"v_lshrrev_b32 v6, 4, {vr(vL)}")
    a(f"v_lshl_add_u32 v5, v6, 3, v5")
    for idx in range(12):
        a(("ds", "z", f"ds_write_b128 v3, {vr(ACC+4*idx,4)} offset:{idx*1024}"))
    a(("wait", None, "all"))
    a("s_barrier")
    R = 64
    for q in range(3):
        for w in range(4):
            a(("ds", f"y{q}", f"ds_read_b128 {vr(R+(q*4+w)*4,4)}, v4 offset:{w*15360 + q*4096}"))
    a(f"s_mul_i32 {sr(sOff)}, {sr(sMT)}, {48*1024}")
    a(f"s_lshl_b32 {sr(sA)}, {sr(sNT)}, 7")
    a(f"s_add_u32 {sr(sOff)}, {sr(sOff)}, {sr(sA)}")
    a(f"s_lshl_b32 {sr(sA)}, {sr(sW)}, 5")
    a(f"s_add_u32 {sr(sOff)}, {sr(sOff)}, {sr(sA)}")
    for q in range(3):
        a(("wait", None, [f"y{q}"]))
        b = R + q * 16
        for e in range(0, 4, 2):
            a(f"v_pk_add_f32 {vr(b+e,2)}, {vr(b+e,2)}, {vr(b+4+e,2)}")
            a(f"v_pk_add_f32 {vr(b+8+e,2)}, {vr(b+8+e,2)}, {vr(b+12+e,2)}")
        for e in range(0, 4, 2):
            a(f"v_pk_add_f32 {vr(b+e,2)}, {vr(b+e,2)}, {vr(b+8+e,2)}")
        a(f"v_cvt_pk_bf16_f32 {vr(b)}, {vr(b)}, {vr(b+1)}")
        a(f"v_cvt_pk_bf16_f32 {vr(b+1)}, {vr(b+2)}, {vr(b+3)}")
        a(("vm", "out", f"buffer_store_dwordx2 {vr(b,2)}, v5, {sr(S_OUT,4)}, {sr(sOff)} offen"))
        if q < 2:
            a(f"s_add_u32 {sr(sOff)}, {sr(sOff)}, 16384")
    if diag:
        a("s_waitcnt vmcnt(0)")
        a(stamp())
        a(f"s_memrealtime {sr(sSt + 2*nstamp[0], 2)}")
        a("s_waitcnt lgkmcnt(0)")
        n = nstamp[0]
        print("nstamps", n, file=sys.stderr)
        a("v_mov_b32 v20, 0")
        for i in range(2 * n + 4):
            a(f"v_writelane_b32 v20, s{58+i}, {i}")
        a(f"s_lshl_b32 {sr(sA)}, s2, 2")
        a(f"s_add_u32 {sr(sA)}, {sr(sA)}, {sr(sW)}")
        a(f"s_lshl_b32 {sr(sA)}, {sr(sA)}, 8")
        a(f"s_add_u32 {sr(sA)}, {sr(sA)}, {WS_DIAG}")
        a(f"v_lshlrev_b32 v21, 2, {vr(vL)}")
        a(f"buffer_store_dword v20, v21, {sr(S_WS,4)}, {sr(sA)} offen untracked")
    a("L_end:")
    a("s_endpgm")
    a("L_poll1:")
    a("s_mov_b32 s13, 0x100000")
    a("L_poll1b:")
    a("s_sleep 8")
    a(f"buffer_load_dword v244, v245, {sr(S_DBG,4)}, {sr(sFl)} offen sc1 untracked")
    a("s_waitcnt vmcnt(0)")
    a("v_cmp_gt_u32 vcc, 32, v244")
    a("s_cbranch_vccz L_poll1_ok")
    a("s_sub_u32 s13, s13, 1")
    a("s_cbranch_scc0 L_poll1b")
    a("s_branch L_poll1_ok")
    for i, j in stubs:
        a(f"L_st{i}_{j}:")
        a(f"s_call_b64 {sr(sRet,2)}, L_rare{j}")
        a(f"s_branch L_bk{i}_{j}")
    for j in range(3):
        a(f"L_rare{j}:")
        a("s_nop 7")
        for q in range(2):
            s = SB + 16 * j + 8 * q
            ci = CIr[j] + 4 * q
            qt = 2 * j + q
            a(f"v_max3_f32 {vr(vMx)}, {vr(s)}, {vr(s+1)}, {vr(s+2)}")
            a(f"v_max3_f32 {vr(vMx)}, {vr(vMx)}, {vr(s+3)}, {vr(s+4)}")
            a(f"v_max3_f32 {vr(vMx)}, {vr(vMx)}, {vr(s+5)}, {vr(s+6)}")
            a(f"v_max_f32 {vr(vMx)}, {vr(vMx)}, {vr(s+7)}")
            a(f"v_mov_b32 {vr(vT0)}, {vr(vMx)}")
            a("s_nop 1")
            a(f"v_permlane32_swap_b32 {vr(vT0)}, {vr(vMx)}")
            a("s_nop 1")
            a(f"v_max_f32 {vr(vMx)}, {vr(vMx)}, {vr(vT0)}")
            a(f"v_mov_b32 {vr(vT0)}, {vr(vMx)}")
            a("s_nop 1")
            a(f"v_permlane16_swap_b32 {vr(vT0)}, {vr(vMx)}")
            a("s_nop 1")
            a(f"v_max_f32 {vr(vMx)}, {vr(vMx)}, {vr(vT0)}")
            a(f"v_add_f32 {vr(vMx)}, 0x41000000, {vr(vMx)}")
            a(f"v_max_f32 {vr(vMx)}, 0, {vr(vMx)}")
            for r in range(8):
                a(f"v_sub_f32 {vr(s+r)}, {vr(s+r)}, {vr(vMx)}")
            for r in range(8):
                a(f"v_exp_f32 {vr(s+r)}, {vr(s+r)}")
            a(f"v_sub_f32 {vr(ci)}, {vr(ci)}, {vr(vMx)}")
            a(f"v_sub_f32 {vr(vT0)}, 0, {vr(vMx)}")
            a(f"v_exp_f32 {vr(vT0)}, {vr(vT0)}")
            for r in range(1, 4):
                a(f"v_mov_b32 {vr(ci+r)}, {vr(ci)}")
            for r in range(4):
                a(f"v_cvt_pk_bf16_f32 {vr(Preg[j]+4*q+r)}, {vr(s+2*r)}, {vr(s+2*r+1)}")
            for r in range(4):
                a(f"v_mul_f32 {vr(LA+4*qt+r)}, {vr(LA+4*qt+r)}, {vr(vT0)}")
            for r in range(16):
                a(f"v_mul_f32 {vr(OK+16*qt+r)}, {vr(OK+16*qt+r)}, {vr(vT0)}")
            for r in range(16):
                a(f"v_accvgpr_read_b32 {vr(vT1)}, {ar(OS+16*qt+r)}")
                a(f"v_mul_f32 {vr(vT1)}, {vr(vT1)}, {vr(vT0)}")
                a(f"v_accvgpr_write_b32 {ar(OS+16*qt+r)}, {vr(vT1)}")
        a("s_nop 1")
        a(f"s_setpc_b64 {sr(sRet,2)}")
    a("L_codeend:")


def generate(opt):
    k = f"{NAME}_kernel"
    out = f"""; GQA block (q-proj + attention + out-proj) fused, generated by work/gen7.py
; @launch grid=(256,1,1) block=(256,1,1) lds={LDS}
.amdgcn_target "amdgcn-amd-amdhsa--gfx950"
.text
.globl {k}
.p2align 8
.type {k},@function
"""
    a = Em()
    gen(a, opt)
    out += a.text()
    out += f""".section .rodata,"a"
.p2align 6
.amdhsa_kernel {k}
  .amdhsa_next_free_vgpr 512
  .amdhsa_next_free_sgpr 102
  .amdhsa_accum_offset 256
  .amdhsa_group_segment_fixed_size 0
  .amdhsa_kernarg_size 64
  .amdhsa_user_sgpr_count 2
  .amdhsa_user_sgpr_kernarg_segment_ptr 1
  .amdhsa_system_sgpr_workgroup_id_x 1
  .amdhsa_float_denorm_mode_32 3
.end_amdhsa_kernel
"""
    return out


if __name__ == "__main__":
    opt = {}
    path = f"cdna_kernels/{NAME}.s"
    for arg in sys.argv[1:]:
        if arg.startswith("-o="):
            path = arg[3:]
        elif "=" in arg:
            k, v = arg.split("=")
            opt[k] = int(v)
        else:
            opt[arg] = True
    txt = generate(opt)
    open(path, "w").write(txt)
    import hazard
    errs = hazard.check(txt)
    print("wrote", path, "hazards", len(errs))
    for e in errs[:20]:
        print("  ", e)
```

```python
import re, sys

def regs(op):
    op = op.strip()
    m = re.fullmatch(r"-?([vas])\[(\d+):(\d+)\]", op)
    if m:
        return {(m.group(1), i) for i in range(int(m.group(2)), int(m.group(3)) + 1)}
    m = re.fullmatch(r"-?([vas])(\d+)", op)
    if m:
        return {(m.group(1), int(m.group(2)))}
    if op in ("vcc", "m0", "exec"):
        return {(op, 0)}
    return set()

TRANS = ("v_exp_f32", "v_rcp_f32", "v_log_f32", "v_rsq_f32", "v_sqrt_f32")

def parse(line):
    line = line.split(";")[0].strip()
    if not line or line.endswith(":") or line.startswith("."):
        return None
    parts = line.split(None, 1)
    op = parts[0]
    ops = []
    if len(parts) > 1:
        rest = parts[1]
        ops = [x.strip().split(" ")[0] for x in re.split(r",(?![^\[]*\])", rest)]
    d = dict(op=op, line=line, w=set(), r=set(), kind="other", states=1)
    if op == "s_nop":
        d["states"] = int(ops[0]) + 1
    elif op.startswith("v_mfma"):
        d["kind"] = "mfma"; d["w"] = regs(ops[0]); d["ab"] = regs(ops[1]) | regs(ops[2]); d["c"] = regs(ops[3]); d["r"] = d["ab"] | d["c"]
        d["passes"] = 4 if "16x16" in op else 8
    elif op.startswith("v_cmp"):
        d["kind"] = "valu"; d["w"] = regs(ops[0]); d["r"] = set().union(*[regs(x) for x in ops[1:]])
    elif op.startswith("v_permlane"):
        d["kind"] = "valu"; d["w"] = regs(ops[0]) | regs(ops[1]); d["r"] = d["w"]
    elif op.startswith("v_"):
        d["kind"] = "valu"; d["w"] = regs(ops[0]); d["r"] = set().union(*[regs(x) for x in ops[1:]])
        if op.startswith("v_fmac") or op.startswith("v_writelane"):
            d["r"] |= d["w"]
    elif op.startswith("ds_read"):
        d["kind"] = "ds"; d["w"] = regs(ops[0]); d["r"] = regs(ops[1])
    elif op.startswith("ds_write"):
        d["kind"] = "ds"; d["r"] = regs(ops[0]) | regs(ops[1])
    elif op.startswith("buffer_load"):
        d["kind"] = "vmem"
        if line.endswith("lds"):
            d["r"] = set().union(*[regs(x) for x in ops]) | {("m0", 0)}; d["dma"] = True
        else:
            d["w"] = regs(ops[0]); d["r"] = set().union(*[regs(x) for x in ops[1:]])
    elif op.startswith("buffer_store") or op.startswith("buffer_atomic"):
        d["kind"] = "vmem"; d["r"] = set().union(*[regs(x) for x in ops]); d["data"] = regs(ops[0]); d["wide"] = "x4" in op or "x3" in op
    elif op.startswith("s_") and ops:
        d["kind"] = "salu"
        if not (op.startswith("s_cmp") or op.startswith("s_cbranch") or op.startswith("s_branch") or op.startswith("s_waitcnt") or op.startswith("s_bitcmp") or op.startswith("s_sleep") or op.startswith("s_setpc")):
            d["w"] = regs(ops[0]); d["r"] = set().union(*[regs(x) for x in ops[1:]]) if len(ops) > 1 else set()
        else:
            d["r"] = set().union(*[regs(x) for x in ops])
    return d

def check(text):
    ins = []
    for n, l in enumerate(text.split("\n"), 1):
        p = parse(l)
        if p:
            p["n"] = n
            ins.append(p)
    errs = []
    for i, c in enumerate(ins):
        dist = 0
        for j in range(i - 1, max(-1, i - 24), -1):
            p = ins[j]
            if p["op"] in ("s_endpgm", "s_branch", "s_setpc_b64"):
                break
            need = 0; why = ""
            if p["kind"] == "mfma":
                n1 = 8 if p["passes"] == 4 else 12
                if c["kind"] in ("valu", "ds", "vmem") and (p["w"] & (c["r"] | c["w"])):
                    need, why = n1, "mfma D -> valu/mem"
                if c["kind"] == "mfma":
                    if p["w"] & c["ab"]:
                        need, why = n1, "mfma D -> mfma AB"
                    elif (p["w"] & c["c"]) and p["w"] != c["c"]:
                        need, why = n1 - 2, "mfma D -> partial C"
                    elif (p["w"] & c["w"]) and not (p["w"] & c["c"]):
                        need, why = n1 - 2, "mfma D -> mfma D WAW (conservative)"
                if c["kind"] == "valu" and (p["c"] & c["w"]):
                    nn = 3 if p["passes"] == 4 else 7
                    if nn > need:
                        need, why = nn, "mfma C WAR"
            if p["kind"] == "valu":
                vw = {x for x in p["w"] if x[0] in "va"}
                sw = {x for x in p["w"] if x[0] in ("s", "vcc")}
                if c["kind"] == "mfma" and (vw & c["r"]):
                    need, why = 2, "valu -> mfma"
                if c["op"].startswith("v_permlane") and (vw & c["r"]):
                    need, why = 2, "valu -> permlane"
                if p["op"] in TRANS and c["kind"] == "valu" and c["op"] not in TRANS and (vw & c["r"]):
                    need, why = max(need, 1), "trans -> valu"
                if c["op"].startswith("v_readfirstlane") and (vw & c["r"]):
                    need, why = max(need, 1), "valu -> readfirstlane"
                if c["kind"] == "vmem" and (sw & c["r"]):
                    need, why = 5, "valu sgpr -> vmem"
                if c["kind"] == "valu" and (sw & c["r"]):
                    need, why = max(need, 2), "valu sgpr -> valu"
            if p["kind"] == "salu" and ("m0", 0) in p["w"] and c.get("dma"):
                need, why = 1, "m0 -> dma"
            if p["kind"] == "vmem" and p.get("wide") and c["kind"] in ("valu", "mfma") and (p["data"] & c["w"]):
                need, why = 2, "store data WAR"
            if need > dist:
                errs.append(f"line {c['n']}: '{c['line']}' needs {need} after line {p['n']} '{p['line']}' has {dist} ({why})")
            dist += p["states"]
    return errs

if __name__ == "__main__":
    for f in sys.argv[1:]:
        e = check(open(f).read())
        print(f, "hazards:", len(e))
        for x in e[:30]:
            print("  ", x)
```

```python
import sys
import math
from gen1 import vr, ar, sr, f32bits, NAME
from gen7 import Em, spread

MF = "v_mfma_f32_16x16x32_bf16"
PS = 1056
KSZ = 16 * PS
SLOT = 2 * KSZ
WPS = 1040
WQSZ = 16 * WPS
QBSZ = WQSZ + 24 * PS
QB = {2: SLOT, 0: SLOT + QBSZ, 1: SLOT + 2 * QBSZ}
QEX = 3 * SLOT
LDS = 163840
WS_FLG = 16 << 20
FST = 1152
WS_PART = (16 << 20) + (512 << 10)
WS_DIAG = 32 << 20
WS_SIZE = 64 << 20
TS = 131072 + 384
SCALE = math.log2(math.e) / math.sqrt(128.0)


def gen(a, opt):
    diag = opt.get("diag", False)
    S_X, S_WQ, S_K, S_V, S_WO, S_WS, S_DBG, S_OUT = 16, 20, 24, 28, 32, 36, 4, 8
    sW, sB, sH, sKH = 40, 43, 44, 42
    sOwn, sMask, sG, sRet = 45, 47, 49, 50
    sKl, sLb, sD = 52, 53, 54
    sA, sBt, sC = 55, 56, 57
    sSt = 60
    sXld, sWld, sRot, sXs, sWs = 91, 93, 94, 95, 96
    sMT, sNT, sOff, sOffW, sLl, sFl = 97, 98, 99, 14, 90, 15
    vL16, vL, vDmaKV, vBE, vDmaX = 0, 1, 2, 3, 4
    vK = [5, 6]
    vV = [7, 8]
    vTa, vTb = 9, 10
    vMx, vT0, vT1, vBO, vDg = 11, 12, 13, 14, 15
    OA = 16
    QF = 112
    SB = 160
    PB = 208
    CI = 232
    ET = 244
    TM = 248
    vX = [184, 185, 186]
    vW = [187, 188, 189]
    vDX = [190, 191, 192, 193, 194, 195]
    vDW = [196, 197, 198, 199]
    VO = [0, 5, 6]
    KF, VF, LA, ONES = 176, 112, 240, 252
    nt = " nt"
    nstamp = [0]

    scnt = [0]

    def stamp(extra=False):
        if not extra:
            scnt[0] += 1
            if opt.get("odiag") and scnt[0] in (2, 3, 4, 5, 6, 7, 8):
                return []
        elif not opt.get("odiag"):
            return []
        if diag:
            r = f"{'s_memrealtime' if opt.get('rt') else 's_memtime'} {sr(sSt + 2 * nstamp[0], 2)}"
            nstamp[0] += 1
            return [r]
        return []

    a(f"{NAME}_kernel:")
    a("s_cmp_ge_u32 s2, 256")
    a("s_cbranch_scc1 L_end")
    a("s_load_dwordx8 s[72:79], s[0:1], 0")
    a("s_load_dwordx8 s[80:87], s[0:1], 32")
    if diag:
        a(f"s_memrealtime {sr(58, 2)}")
    a(stamp())
    a(f"v_lshrrev_b32 v15, 6, v0")
    a(f"v_and_b32 {vr(vL)}, 63, v0")
    a(f"s_and_b32 {sr(sA)}, s2, 7")
    a(f"v_readfirstlane_b32 {sr(sW)}, v15")
    a(f"s_lshl_b32 {sr(sA)}, {sr(sA)}, 2")
    a(f"s_bfe_u32 {sr(sBt)}, s2, 0x20003")
    a(f"s_add_u32 {sr(sH)}, {sr(sA)}, {sr(sBt)}")
    a(f"s_lshr_b32 {sr(sB)}, s2, 5")
    if opt.get("hmap", 0) == 2:
        a(f"s_and_b32 {sr(sH)}, s2, 31")
    if opt.get("hmap", 0) == 4:
        a(f"s_bfe_u32 {sr(sB)}, s2, 0x30003")
        a(f"s_lshr_b32 {sr(sBt)}, s2, 6")
        a(f"s_add_u32 {sr(sH)}, {sr(sA)}, {sr(sBt)}")
    if opt.get("hmap", 0) == 3:
        a(f"s_and_b32 {sr(sB)}, s2, 1")
        a(f"s_lshl_b32 {sr(sB)}, {sr(sB)}, 2")
        a(f"s_add_u32 {sr(sB)}, {sr(sB)}, {sr(sBt)}")
        a(f"s_and_b32 {sr(sH)}, s2, 6")
        a(f"s_lshl_b32 {sr(sH)}, {sr(sH)}, 2")
        a(f"s_lshr_b32 {sr(sBt)}, s2, 5")
        a(f"s_add_u32 {sr(sH)}, {sr(sH)}, {sr(sBt)}")
    a(f"s_mul_i32 {sr(sRot)}, {sr(sBt)}, {opt.get('roth', 2)}")
    a(f"s_add_u32 {sr(sRot)}, {sr(sRot)}, {sr(sB)}")
    a(f"s_and_b32 {sr(sRot)}, {sr(sRot)}, {opt.get('rot2', 3)}")
    a(f"v_and_b32 v15, 3, {vr(vL)}")
    a(f"v_lshlrev_b32 v14, 4, v15")
    a(f"v_lshrrev_b32 v12, 4, {vr(vL)}")
    a(f"v_lshl_add_u32 v11, v12, 6, v14")
    a(f"v_bfe_u32 v13, {vr(vL)}, 2, 2")
    a(f"v_lshl_add_u32 {vr(vDmaKV)}, v13, 8, v11")
    a(f"v_lshl_add_u32 {vr(vDW[0])}, v13, 13, v11")
    a(f"v_lshrrev_b32 v10, 5, {vr(vL)}")
    a(f"v_lshl_add_u32 v11, v10, 6, v14")
    a(f"v_bfe_u32 v9, {vr(vL)}, 2, 3")
    a(f"v_lshl_add_u32 {vr(vDmaX)}, v9, 10, v11")
    a(f"s_mul_i32 {sr(sA)}, {sr(sW)}, {16*8192}")
    a(f"v_add_u32 {vr(vDW[0])}, {sr(sA)}, {vr(vDW[0])}")
    for p in range(1, 4):
        a(f"v_add_u32 {vr(vDW[p])}, {p*(4*8192 - WPS)}, {vr(vDW[0])}")
    a(f"s_mul_i32 {sr(sA)}, {sr(sW)}, {6*8192}")
    a(f"v_add_u32 {vr(vDX[0])}, {sr(sA)}, {vr(vDmaX)}")
    for p in range(1, 6):
        a(f"v_add_u32 {vr(vDX[p])}, {p*8192 - (p%3)*PS}, {vr(vDX[0])}")
    a(f"s_mul_i32 {sr(sXld)}, {sr(sW)}, {6*PS}")
    a(f"s_lshl_b32 {sr(sWld)}, {sr(sW)}, 12")
    sWq = 92
    a(f"s_mul_i32 {sr(sWq)}, {sr(sW)}, {4*WPS}")
    a(f"s_mul_i32 {sr(sA)}, {sr(sB)}, 196608")
    a(f"s_lshl_b32 {sr(sBt)}, {sr(sH)}, 8")
    a(f"s_mov_b32 {sr(S_X+2)}, 196608")
    a(f"s_mov_b32 {sr(S_X+3)}, 0x20000")
    a(f"s_sub_u32 {sr(S_WQ+2)}, 0x400000, {sr(sBt)}")
    a(f"s_mov_b32 {sr(S_WQ+3)}, 0x20000")
    a("s_waitcnt lgkmcnt(0)")
    a(f"s_add_u32 {sr(S_X)}, s72, {sr(sA)}")
    a(f"s_addc_u32 {sr(S_X+1)}, s73, 0")
    a(f"s_add_u32 {sr(S_WQ)}, s78, {sr(sBt)}")
    a(f"s_addc_u32 {sr(S_WQ+1)}, s79, 0")

    def qgroup(s, nop=False):
        base = QB[s % 3]
        items = []
        for p in range(4):
            pre = []
            if p == 0:
                pre = [f"{'s_xor_b32' if opt.get('xr') else 's_add_u32'} {sr(sXs)}, {sr(sRot)}, {s}",
                       f"s_add_u32 m0, {sr(sWq)}, {base}",
                       f"s_and_b32 {sr(sXs)}, {sr(sXs)}, 7",
                       f"s_lshl_b32 {sr(sWs)}, {sr(sXs)}, 19"]
            post = [f"s_lshl_b32 {sr(sXs)}, {sr(sXs)}, 7"] if p == 0 else []
            if p == 3:
                post = [f"s_add_u32 m0, {sr(sXld)}, {base + WQSZ}"]
            items.append(pre + [("vm", f"Q{s}", f"buffer_load_dwordx4 {vr(vDW[p])}, {sr(S_WQ,4)}, {sr(sWs)} offen offset:{p*WPS}{' nt' if opt.get('ntq', 0) & 1 else ''} lds")] + post)
        for p in range(6):
            pre = ["s_nop 0"] if (nop and p in (0, 3)) else []
            post = [f"s_add_u32 m0, m0, {3*PS}"] if p == 2 else []
            items.append(pre + [("vm", f"Q{s}", f"buffer_load_dwordx4 {vr(vDX[p])}, {sr(S_X,4)}, {sr(sXs)} offen offset:{(p%3)*PS} lds")] + post)
        return items

    def kvpieces(isK, g, ps=range(4)):
        items = []
        for p in ps:
            items.append([f"s_add_u32 m0, {sr(sKl)}, {(g%3)*SLOT + (0 if isK else KSZ) + p*32}",
                          f"s_mov_b32 {sr(sG)}, {g*16384}",
                          ("vm", ("K" if isK else "V") + str(g),
                           f"buffer_load_dwordx4 {vr(vDmaKV)}, {sr(S_K if isK else S_V,4)}, {sr(sG)} offen offset:{p*1024}{nt} lds")])
        return items

    def w0only(lbl, mask, body):
        return [f"s_cmp_lg_u32 {sr(sW)}, 0", f"s_cbranch_scc1 {lbl}",
                (f"s_mov_b64 exec, {mask}" if mask == 1 else "s_mov_b32 exec_hi, 0")] + body + ["s_mov_b64 exec, -1", f"{lbl}:"]

    sN = 92

    def mknonce():
        return [f"s_or_b32 {sr(sA)}, s2, {sr(sW)}", f"s_cmp_lg_u32 {sr(sA)}, 0", "s_cbranch_scc1 L_c1", "s_mov_b64 exec, 3",
                "s_memrealtime s[12:13]", f"v_lshlrev_b32 v8, 7, {vr(vL)}", "s_waitcnt lgkmcnt(0)", "s_or_b32 s12, s12, 1",
                f"v_mov_b32 {vr(TM+4)}, s12", f"v_mov_b32 {vr(TM+5)}, s13",
                f"buffer_store_dwordx2 {vr(TM+4,2)}, v8, {sr(S_DBG,4)}, 0 offen sc1 untracked", "s_mov_b64 exec, -1", "L_c1:"]

    def publish():
        return [f"s_cmp_lg_u32 {sr(sW)}, 0", "s_cbranch_scc1 L_c3", "s_mov_b64 exec, 0xffff",
                f"buffer_store_dwordx2 {vr(vT0,2)}, {vr(vMx)}, {sr(S_WS,4)}, {sr(sFl)} offen sc1 untracked",
                "s_mov_b64 exec, -1", "L_c3:"]

    def pubprep():
        return [f"v_and_b32 {vr(vMx)}, 1, {vr(vL)}", f"v_lshrrev_b32 {vr(vT0)}, 1, {vr(vL)}", f"v_lshl_add_u32 {vr(vMx)}, {vr(vT0)}, 2, {vr(vMx)}",
                f"v_mul_u32_u24 {vr(vMx)}, {8*FST}, {vr(vMx)}",
                f"s_and_b32 {sr(sFl)}, {sr(sB)}, 6", f"s_lshr_b32 {sr(sA)}, {sr(sH)}, 4", f"s_add_u32 {sr(sFl)}, {sr(sFl)}, {sr(sA)}",
                f"s_and_b32 {sr(sA)}, {sr(sB)}, 1", f"s_lshl_b32 {sr(sA)}, {sr(sA)}, 4", f"s_add_u32 {sr(sFl)}, {sr(sFl)}, {sr(sA)}",
                f"s_mul_i32 {sr(sFl)}, {sr(sFl)}, {FST}", f"s_and_b32 {sr(sA)}, {sr(sH)}, 15", f"s_lshl_b32 {sr(sA)}, {sr(sA)}, 3",
                f"s_add_u32 {sr(sFl)}, {sr(sFl)}, {sr(sA)}", f"s_add_u32 {sr(sFl)}, {sr(sFl)}, {WS_FLG}",
                f"v_mov_b32 {vr(vT0)}, {sr(sN)}", f"v_mov_b32 {vr(vT1)}, {sr(sN+1)}"]

    if opt.get("wf") == -3:
        a([f"s_lshl_b32 {sr(sA)}, s2, 14", f"s_add_u32 {sr(sA)}, {sr(sA)}, {sr(sWld)}",
           f"v_lshl_add_u32 {vr(TM+3)}, {vr(vL)}, 6, {sr(sA)}",
           ("vm", "WP", f"global_load_dword {vr(TM+3)}, {vr(TM+3)}, s[80:81]")])
    a(qgroup(0, True))
    if opt.get("cpf", 1):
        a("s_getpc_b64 s[88:89]")
        a("L_pc:")
        a(f"s_lshr_b32 {sr(sA)}, s2, 3")
        a(f"s_lshl_b32 {sr(sA)}, {sr(sA)}, 2")
        a(f"s_add_u32 {sr(sA)}, {sr(sA)}, {sr(sW)}")
        a(f"s_lshl_b32 {sr(sA)}, {sr(sA)}, 9")
        a(f"v_lshl_add_u32 v8, v12, 7, {sr(sA)}")
        a("v_min_u32 v8, L_codeend-L_pc-4, v8")
        a(("vm", "CP", f"global_load_dword {vr(TM)}, v8, s[88:89]"))
    a(f"s_lshl_b32 {sr(sA)}, {sr(sB)}, 5")
    a(f"s_add_u32 {sr(sA)}, {sr(sA)}, {sr(sH)}")
    a(f"s_lshl_b32 {sr(sA)}, {sr(sA)}, 18")
    a(f"s_add_u32 {sr(S_K)}, s74, {sr(sA)}")
    a(f"s_addc_u32 {sr(S_K+1)}, s75, 0")
    a(f"s_mov_b32 {sr(S_K+2)}, 0x40000")
    a(f"s_mov_b32 {sr(S_K+3)}, 0x20000")
    a(f"s_add_u32 {sr(S_V)}, s76, {sr(sA)}")
    a(f"s_addc_u32 {sr(S_V+1)}, s77, 0")
    a(f"s_mov_b32 {sr(S_V+2)}, 0x40000")
    a(f"s_mov_b32 {sr(S_V+3)}, 0x20000")
    if opt.get("kvt", 1):
        a("v_mov_b32 v8, 0")
        a(("vm", "CP", f"buffer_load_dword {vr(TM+1)}, v8, {sr(S_K,4)}, 0 offen nt"))
        a(("vm", "CP", f"buffer_load_dword {vr(TM+2)}, v8, {sr(S_V,4)}, 0 offen nt"))
    a(f"s_mov_b32 {sr(S_WS)}, s86")
    a(f"s_mov_b32 {sr(S_WS+1)}, s87")
    a(f"s_mov_b32 {sr(S_WS+2)}, {WS_SIZE}")
    a(f"s_mov_b32 {sr(S_WS+3)}, 0x20000")
    a(f"s_mov_b32 {sr(S_DBG)}, s84")
    a(f"s_mov_b32 {sr(S_DBG+1)}, s85")
    a(f"s_mov_b32 {sr(S_DBG+2)}, 256")
    a(f"s_mov_b32 {sr(S_DBG+3)}, 0x20000")
    a(mknonce())
    a(f"s_mov_b32 {sr(S_OUT)}, s82")
    a(f"s_mov_b32 {sr(S_OUT+1)}, s83")
    a(f"s_mov_b32 {sr(S_OUT+2)}, {1536*1024}")
    a(f"s_mov_b32 {sr(S_OUT+3)}, 0x20000")
    a(f"v_add_u32 {vr(vDmaKV)}, {sr(sWld)}, {vr(vDmaKV)}")
    a(f"s_mul_i32 {sr(sKl)}, {sr(sW)}, {4*PS}")
    nat = opt.get("nat", 0)
    a(f"v_lshlrev_b32 v11, {3 if nat else 4}, v15")
    a(f"v_lshl_add_u32 v11, v13, 6, v11")
    a(f"v_mul_u32_u24 v9, {2*WPS}, v12")
    a(f"v_add_u32 v11, v9, v11")
    for r in range(3):
        a(f"v_add_u32 {vr(vW[r])}, {QB[r]}, v11")
    a(f"v_lshlrev_b32 v9, 3, v15")
    a(f"v_lshl_add_u32 v9, v13, 6, v9")
    a(f"v_lshl_add_u32 v11, v10, 10, v9")
    a(f"v_and_b32 v8, 1, v12")
    a(f"v_lshl_add_u32 v11, v8, 8, v11")
    a(f"v_lshl_add_u32 {vr(vBE)}, v8, 5, v11")
    a(f"v_xor_b32 {vr(vBO)}, 32, {vr(vBE)}")
    a(f"v_lshlrev_b32 v8, 5, v8")
    a(f"v_xor_b32 {vr(vDmaX)}, v8, {vr(vDmaX)}")
    a(f"v_mul_u32_u24 v11, {PS}, v12")
    a(f"v_add_u32 v11, v11, v9")
    a(f"v_add_u32 {vr(vV[0])}, {KSZ}, v11")
    a(f"v_add_u32 {vr(vV[1])}, {KSZ + 2*SLOT}, v11")
    a(f"v_mul_u32_u24 v11, {PS}, v13")
    a(f"v_lshl_add_u32 v11, v15, 6, v11")
    a(f"v_lshl_add_u32 {vr(vK[0])}, v12, 4, v11")
    a(f"v_add_u32 {vr(vK[1])}, {2*SLOT}, {vr(vK[0])}")
    a(f"v_bfe_u32 v11, {vr(vL)}, 3, 1")
    a(f"v_mul_u32_u24 v11, {PS}, v11")
    a(f"v_and_b32 v9, 7, {vr(vL)}")
    a(f"v_lshl_add_u32 v11, v9, 6, v11")
    a(f"v_lshl_add_u32 v11, v12, 4, v11")
    a(f"v_add_u32 v11, {sr(sXld)}, v11")
    for r in range(3):
        a(f"v_add_u32 {vr(vX[r])}, {QB[r] + WQSZ}, v11")
    a(f"v_lshlrev_b32 {vr(vL16)}, 4, {vr(vL)}")
    a(f"s_bfe_u32 {sr(sA)}, s2, 0x20001")
    a(f"s_lshl_b32 {sr(sA)}, {sr(sA)}, 2")
    a(f"s_bfe_u32 {sr(sBt)}, s2, 0x20003")
    a(f"s_add_u32 {sr(sMT)}, {sr(sA)}, {sr(sBt)}")
    a(f"s_lshr_b32 {sr(sNT)}, s2, 5")
    a(f"s_and_b32 {sr(sKH)}, s2, 1")
    a(f"s_mul_i32 {sr(sC)}, {sr(sNT)}, {opt.get('rn', 1)}")
    a(f"s_mul_i32 {sr(sBt)}, {sr(sBt)}, {opt.get('rm', 4)}")
    a(f"s_add_u32 {sr(sOff)}, {sr(sC)}, {sr(sBt)}")
    a(f"s_and_b32 {sr(sOff)}, {sr(sOff)}, 15")
    a(f"s_lshl_b32 {sr(sOffW)}, {sr(sOff)}, 15")
    a(f"s_lshl_b32 {sr(sOff)}, {sr(sOff)}, 10")
    a(f"s_lshl_b32 {sr(sA)}, {sr(sNT)}, 7")
    a(f"s_sub_u32 {sr(S_WO+2)}, 0x80000, {sr(sA)}")
    a(f"s_lshl_b32 {sr(sBt)}, {sr(sW)}, 19")
    a(f"s_add_u32 {sr(sA)}, {sr(sA)}, {sr(sBt)}")
    a(f"s_lshl_b32 {sr(sBt)}, {sr(sKH)}, 21")
    a(f"s_add_u32 {sr(sA)}, {sr(sA)}, {sr(sBt)}")
    a(f"s_add_u32 {sr(S_WO)}, s80, {sr(sA)}")
    a(f"s_addc_u32 {sr(S_WO+1)}, s81, 0")
    a(f"s_mov_b32 {sr(S_WO+3)}, 0x20000")
    a(f"s_mul_i32 {sr(sLl)}, {sr(sW)}, 15360")
    a(f"s_add_u32 {sr(sLl)}, {sr(sLl)}, {QEX}")
    a(f"s_lshl_b32 {sr(sLb)}, {sr(sW)}, 12")
    a(f"s_mul_i32 {sr(sOwn)}, s2, {FST}")
    a(f"s_add_u32 {sr(sOwn)}, {sr(sOwn)}, {WS_FLG}")
    a(f"s_mov_b32 {sr(sMask)}, 0x40004000")
    a(f"v_mov_b32 v11, 0x3f803f80")
    if opt.get("sp1", 1):
        a("v_cmp_eq_u32 vcc, 0, v15")
        a("s_nop 1")
        a("v_cndmask_b32 v11, 0, v11, vcc")
    a(f"s_mov_b32 {sr(sC)}, {hex(f32bits(SCALE))}")
    a(f"s_mov_b32 {sr(sBt)}, {sr(sC)}")
    for r in range(4):
        a(f"v_accvgpr_write_b32 {ar(ONES+r)}, v11")
    K, V = True, False
    wq_touch = [f"s_lshr_b32 {sr(sA)}, s2, 1", f"s_lshl_b32 {sr(sA)}, {sr(sA)}, 14", f"s_add_u32 {sr(sA)}, {sr(sA)}, {sr(sWld)}",
                f"s_lshl_b32 {sr(sD)}, {sr(sKH)}, 21", f"s_add_u32 {sr(sA)}, {sr(sA)}, {sr(sD)}",
                f"v_lshl_add_u32 {vr(TM+3)}, {vr(vL)}, 6, {sr(sA)}",
                ("vm", "WP", f"global_load_dword {vr(TM+3)}, {vr(TM+3)}, s[80:81]")]
    if opt.get("fol", 0):
        wq_touch = [f"s_bitcmp1_b32 {sr(sRot)}, 1", "s_cbranch_scc1 L_not",
                    f"s_bfe_u32 {sr(sA)}, s2, 0x20001", f"s_lshr_b32 {sr(sD)}, s2, 4", f"s_lshl_b32 {sr(sD)}, {sr(sD)}, 2",
                    f"s_add_u32 {sr(sA)}, {sr(sA)}, {sr(sD)}", f"s_lshl_b32 {sr(sA)}, {sr(sA)}, 2", f"s_add_u32 {sr(sA)}, {sr(sA)}, {sr(sW)}",
                    f"s_lshl_b32 {sr(sA)}, {sr(sA)}, 13", f"s_lshl_b32 {sr(sD)}, {sr(sKH)}, 21", f"s_add_u32 {sr(sA)}, {sr(sA)}, {sr(sD)}",
                    f"v_lshl_add_u32 {vr(TM+3)}, {vr(vL)}, 7, {sr(sA)}",
                    f"global_load_dword {vr(TM+3)}, {vr(TM+3)}, s[80:81]", "L_not:"]
    if opt.get("wf") == -2:
        a(wq_touch)
    a(qgroup(1, True))
    if opt.get("wf") == -1:
        a(wq_touch)

    def xf(r, qt, ks):
        return 88 * r + (qt * 2 + ks) * 4

    def wf(r, t, ks):
        return 88 * r + 24 + (t * 2 + ks) * 4

    def qreads(s):
        r = s & 1
        b = s % 3
        out = []
        for ks in range(2):
            for qt in range(3):
                out.append(("ds", f"F{s}", f"ds_read_b128 {ar(xf(r,qt,ks),4)}, {vr(vX[b])} offset:{qt*2*PS + ks*512}"))
            for t in range(8):
                for i in range(2):
                    out.append(("ds", f"F{s}", f"ds_read_b64_tr_b16 {ar(wf(r,t,ks)+2*i, 2)}, {vr(vW[b])} offset:{(8*ks+i)*WPS + (t>>1)*256 + (t&1)*(32 if nat else 8)}"))
        return out

    def qacc(qt, t):
        return OA + (qt * 8 + t) * 4

    def qmfmas(s):
        r = s & 1
        out = []
        if s == 7:
            order = [(ks, t, qt) for qt in range(3) for t in range(8) for ks in range(2)]
        else:
            order = [(ks, t, qt) for t in range(8) for qt in range(3) for ks in range(2)] if opt.get("qch", 1) else \
                    [(ks, t, qt) for ks in range(2) for t in range(8) for qt in range(3)]
        for ks, t, qt in order:
            acc = vr(qacc(qt, t), 4)
            c = "0" if (s == 0 and ks == 0) else acc
            out.append(f"{MF} {acc}, {ar(wf(r,t,ks),4)}, {ar(xf(r,qt,ks),4)}, {c}")
        return out

    def fin(qt):
        acc = qacc(qt, 0)
        out = []
        for e in range(16):
            if opt.get("pkm", 1):
                out.append(f"v_pk_mul_f32 {vr(acc+2*e,2)}, {vr(acc+2*e,2)}, {sr(sBt,2)}")
            else:
                out += [f"v_mul_f32 {vr(acc+2*e+h)}, {sr(sC)}, {vr(acc+2*e+h)}" for h in range(2)]
            if e >= 1:
                out.append(f"v_cvt_pk_bf16_f32 {vr(QF+qt*16+e-1)}, {vr(acc+2*e-2)}, {vr(acc+2*e-1)}")
        out.append(f"v_cvt_pk_bf16_f32 {vr(QF+qt*16+15)}, {vr(acc+30)}, {vr(acc+31)}")
        if nat:
            prs = [(QF + qt * 16 + 4 * ks + h, QF + qt * 16 + 4 * ks + 2 + h) for ks in range(4) for h in range(2)]
            out += [f"v_permlane32_swap_b32 {vr(x)}, {vr(y)}" for x, y in prs]
            out += [f"v_permlane16_swap_b32 {vr(x)}, {vr(y)}" for x, y in prs]
        return out

    def kread(g, n):
        sl = g % 3
        kt, ks = n // 4, n % 4
        return ("ds", f"k{g}_{n}", f"ds_read_b128 {ar(KF+4*n,4)}, {vr(vK[sl>>1])} offset:{(sl&1)*SLOT + kt*4*PS + ks*256}")

    VF2 = 80

    def vfr(g, m):
        return (VF2 if (m < 8 and g % 2 == 0) else VF) + 4 * m

    def vread(g, m, i):
        sl = g % 3
        dt, blk = m // 2, m % 2
        return ("ds", f"v{g}_{m}", f"ds_read_b64_tr_b16 {ar(vfr(g,m)+2*i,2)}, {vr(vV[sl>>1])} offset:{(sl&1)*SLOT + blk*8*PS + 4*i*PS + (dt>>1)*256 + (dt&1)*32}")

    def qk(j, first=False):
        out = []
        for n in range(16):
            kt, ks = n // 4, n % 4
            d = vr(SB + 16 * j + 4 * kt, 4)
            c = ("0" if first else vr(CI + 4 * j, 4)) if ks == 0 else d
            out.append(f"{MF} {d}, {ar(KF+4*n,4)}, {vr(QF+j*16+ks*4,4)}, {c}")
        return out

    def pv(g, j, first=False, sumfirst=False):
        out = []
        for m in range(16):
            dt, blk = m // 2, m % 2
            d = vr(OA + (j * 8 + dt) * 4, 4)
            out.append(f"{MF} {d}, {ar(vfr(g,m),4)}, {vr(PB+8*j+4*blk,4)}, {'0' if (first and blk == 0) else d}")
        d = ar(LA + 4 * j, 4)
        sm = [f"{MF} {d}, {ar(ONES,4)}, {vr(PB+8*j+4*blk,4)}, {'0' if (first and blk == 0) else d}" for blk in range(2)]
        return sm + out if sumfirst else out + sm

    a(("wait", ["Q0"], None))
    a("s_barrier")
    a(stamp())
    a(qreads(0))
    es = opt.get("es", 20)
    if not es:
        a(qgroup(2, True))
    plans = {
        3: {4: qgroup(7) + kvpieces(K, 0) + kvpieces(V, 0), 5: kvpieces(K, 1), 6: kvpieces(V, 1), 7: kvpieces(K, 2)},
        5: {4: qgroup(7) + kvpieces(K, 0), 5: kvpieces(K, 1), 6: kvpieces(V, 0), 7: kvpieces(V, 1), 8: kvpieces(K, 2)},
        6: {4: qgroup(7) + kvpieces(K, 0), 5: kvpieces(V, 0) + kvpieces(K, 1), 6: kvpieces(V, 1), 7: kvpieces(K, 2)},
    }
    plan = {s: qgroup(s + 3) for s in range(5)}
    plan.update(plans[opt.get("plan", 6)])
    if opt.get("wf", 0) >= 0:
        k_ = opt.get("wf", 0)
        nq = 10 if k_ < 5 else 0
        plan[k_] = plan[k_][:nq] + [wq_touch] + plan[k_][nq:]
    qd = opt.get("qdiag")
    for s in range(8):
        fill = {}
        if s == 0 and es:
            a(("wait", None, ["F0"]))
            spread(fill, qgroup(2), 0, es)
            fill.setdefault(es, []).extend([("wait", ["Q1"], None), "s_barrier"])
            if qd:
                fill[es] += ["s_memtime s[88:89]", "s_waitcnt lgkmcnt(0)", f"v_writelane_b32 {vr(vDg)}, s88, 0"]
            spread(fill, qreads(1), es + 1, 46)
            spread(fill, plan[0], es + 1, 48)
            a.spine(qmfmas(0), fill)
            continue
        if qd:
            a("s_memtime s[100:101]")
        a(("wait", [f"Q{s+1}"] if s < 7 else ["K0"], "all" if qd else [f"F{s}"]))
        a("s_barrier")
        if qd:
            a([f"v_writelane_b32 {vr(vDg)}, s100, {s}", f"v_writelane_b32 {vr(vDg)}, s88, {16+s}", "s_memtime s[88:89]"])
        if s < 7:
            spread(fill, qreads(s + 1), 0, 44)
        spread(fill, plan[s], 0, 48)
        if s == 7:
            spread(fill, [kread(0, n) for n in range(16)], 0, 20)
            lag = opt.get("lag", 4)
            carry = []
            for k in range(24):
                acc = OA + 4 * k
                it = [f"v_mul_f32 {vr(acc+r)}, {sr(sC)}, {vr(acc+r)}" for r in range(4)]
                it += [f"v_cvt_pk_bf16_f32 {vr(QF+2*k+h)}, {vr(acc+2*h)}, {vr(acc+2*h+1)}" for h in range(2)]
                g = 2 * k + 1 + lag
                parts = [it[:3], it[3:]]
                if nat and k >= 2 and k % 2 == 0:
                    b_ = QF + 2 * (k - 2)
                    parts[0] = parts[0] + [f"v_permlane32_swap_b32 {vr(b_+h)}, {vr(b_+2+h)}" for h in range(2)]
                    parts[1] = parts[1] + [f"v_permlane16_swap_b32 {vr(b_+h)}, {vr(b_+2+h)}" for h in range(2)]
                for h in range(2):
                    if g + h < 48:
                        fill.setdefault(g + h, []).extend(parts[h])
                    else:
                        carry += parts[h]
            if nat:
                b_ = QF + 44
                carry += ["s_nop 1"] + [f"v_permlane32_swap_b32 {vr(b_+h)}, {vr(b_+2+h)}" for h in range(2)] + ["s_nop 0"] + \
                         [f"v_permlane16_swap_b32 {vr(b_+h)}, {vr(b_+2+h)}" for h in range(2)]
        a.spine(qmfmas(s), fill)
    a(stamp())

    def rowmax(j):
        s_ = SB + 16 * j
        m, m2, t = TM, TM + 1, TM + 2
        out = [f"v_max3_f32 {vr(m)}, {vr(s_)}, {vr(s_+1)}, {vr(s_+2)}", f"v_max3_f32 {vr(m2)}, {vr(s_+3)}, {vr(s_+4)}, {vr(s_+5)}",
               f"v_max3_f32 {vr(m)}, {vr(m)}, {vr(s_+6)}, {vr(s_+7)}", f"v_max3_f32 {vr(m2)}, {vr(m2)}, {vr(s_+8)}, {vr(s_+9)}",
               f"v_max3_f32 {vr(m)}, {vr(m)}, {vr(s_+10)}, {vr(s_+11)}", f"v_max3_f32 {vr(m2)}, {vr(m2)}, {vr(s_+12)}, {vr(s_+13)}",
               f"v_max3_f32 {vr(m)}, {vr(m)}, {vr(s_+14)}, {vr(s_+15)}", f"v_max_f32 {vr(m)}, {vr(m)}, {vr(m2)}"]
        for op in ("v_permlane32_swap_b32", "v_permlane16_swap_b32"):
            out += [f"v_mov_b32 {vr(t)}, {vr(m)}", "s_nop 1", f"{op} {vr(t)}, {vr(m)}", "s_nop 1", f"v_max_f32 {vr(m)}, {vr(m)}, {vr(t)}"]
        return out

    def softmax_first(j):
        s_, P = SB + 16 * j, PB + 8 * j
        out = rowmax(j) + [f"v_sub_f32 {vr(CI+4*j+r)}, 0xc1000000, {vr(TM)}" for r in range(4)]
        for e in range(16):
            out.append(f"v_add_f32 {vr(s_+e)}, {vr(s_+e)}, {vr(CI+4*j)}")
            if e >= 1:
                out.append(f"v_exp_f32 {vr(s_+e-1)}, {vr(s_+e-1)}")
            if e >= 3 and e % 2 == 1:
                out.append(f"v_cvt_pk_bf16_f32 {vr(P+(e-3)//2)}, {vr(s_+e-3)}, {vr(s_+e-2)}")
        out += [f"v_exp_f32 {vr(s_+15)}, {vr(s_+15)}", "s_nop 0", f"v_cvt_pk_bf16_f32 {vr(P+7)}, {vr(s_+14)}, {vr(s_+15)}"]
        return out

    def softmax_items(j):
        s_, P = SB + 16 * j, PB + 8 * j
        ex = [f"v_exp_f32 {vr(ET+(e&3))}, {vr(s_+e)}" for e in range(16)]
        cv = [f"v_cvt_pk_bf16_f32 {vr(P+k)}, {vr(ET+((2*k)&3))}, {vr(ET+((2*k+1)&3))}" for k in range(8)]
        ors = [f"v_or3_b32 {vr(vMx)}, {vr(P)}, {vr(P+1)}, {vr(P+2)}"]
        ors += [f"v_or3_b32 {vr(vMx)}, {vr(vMx)}, {vr(P+k)}, {vr(P+k+1)}" for k in (3, 5)]
        fin_ = [f"v_bitop3_b32 {vr(vMx)}, {vr(vMx)}, {vr(P+7)}, {sr(sMask)} bitop3:0xa8", f"v_cmp_ne_u32 vcc, 0, {vr(vMx)}"]
        return ex, cv, ors, fin_

    stubs = []

    def chk(i, j):
        stubs.append((i, j))
        return [f"s_cbranch_vccnz L_st{i}_{j}", f"L_bk{i}_{j}:"]

    NRK = 16
    NK = 16
    WREG = [("a", 16 * n) for n in range(7)] + [("a", KF + 16 * n) for n in range(4)] + [("a", VF + 16 * n) for n in range(4)] + [("a", LA)]
    assert len(WREG) == NRK

    def wreg(f, n=4, o=0):
        k, t = f // 4, f % 4
        if k >= NRK:
            k -= NRK
        ty, b = WREG[k]
        return (ar if ty == "a" else vr)(b + 4 * t + o, n)

    LOCS = {f"A{k}": (sLl, k * 4096) for k in range(3)}
    for k, off in enumerate([SLOT, SLOT + KSZ, 2 * SLOT, 2 * SLOT + KSZ, 0, KSZ]):
        LOCS[f"B{k}"] = (sLb, off)
    wloc = {}
    locbusy = {}
    dnext = [0]
    rnext = [0]
    free = []

    def D(loc, solo=False):
        n = dnext[0]
        dnext[0] += 1
        assert n < NK
        wloc[n] = loc
        sb, off = LOCS[loc]
        items = []
        for p in range(4):
            pre = []
            if p == 0:
                if loc in locbusy:
                    assert locbusy[loc] < rnext[0], (loc, n)
                    pre.append(("wait", None, [f"t{locbusy[loc]}"]))
                pre += [f"s_add_u32 m0, {sr(sb)}, {off}", f"s_mov_b32 {sr(sD)}, {sr(sOffW)}"]
            elif solo:
                pre += [f"s_add_u32 m0, {sr(sb)}, {off}", "s_nop 0"]
            post = [f"s_add_u32 {sr(sD)}, {sr(sD)}, 7168"] if p < 3 else \
                   [f"s_add_u32 {sr(sOffW)}, {sr(sOffW)}, 32768", f"s_and_b32 {sr(sOffW)}, {sr(sOffW)}, 0x7ffff"]
            items.append(pre + [("vm", f"W{n}", f"buffer_load_dwordx4 {vr(vDmaX)}, {sr(S_WO,4)}, {sr(sD)} offen offset:{p*1024}{' nt' if n < opt.get('ntw', 0) else ''} lds")] + post)
        locbusy[loc] = n
        return items

    def Rd():
        n = rnext[0]
        rnext[0] += 1
        sb, off = LOCS[wloc[n]]
        free.append(wloc[n])
        items = [[f"s_add_u32 {sr(sA)}, {sr(sb)}, {off}", f"v_add_u32 {vr(vTa)}, {sr(sA)}, {vr(vBE)}",
                  f"v_add_u32 {vr(vTb)}, {sr(sA)}, {vr(vBO)}", ("wait", [f"W{n}"], None)]]
        for t in range(4):
            for i2 in range(2):
                items.append(("ds", f"t{n}", f"ds_read_b64_tr_b16 {wreg(4*n+t, 2, 2*i2)}, {vr(vTb if t & 1 else vTa)} offset:{2*i2*1024 + (t>>1)*512}"))
        return items

    def ops(spec):
        out = []
        for ch in spec:
            out += D(free.pop(0)) if ch == "D" else Rd()
        return out

    def mix(main, extra, start=0):
        out = []
        n, m = len(main) - start, len(extra)
        k = 0
        for i, x in enumerate(main):
            out.append(x)
            if i >= start:
                while k < m and k * n < (i - start + 1) * m:
                    out.append(extra[k]); k += 1
        out += extra[k:]
        return out

    def tlbtouch(r):
        return [f"s_mul_i32 {sr(sA)}, {sr(sB)}, 12", f"s_mul_i32 {sr(sD)}, {sr(sMT)}, 6",
                f"v_min_u32 {vr(r)}, 11, {vr(vL)}", f"v_add_u32 {vr(r)}, {sr(sA)}, {vr(r)}",
                f"v_mov_b32 {vr(r+1)}, {sr(sD)}", f"v_cmp_lt_u32 vcc, 31, {vr(vL)}", f"s_mov_b32 {sr(sA)}, {TS}", "s_nop 0",
                f"v_cndmask_b32 {vr(r)}, {vr(r)}, {vr(r+1)}, vcc", f"v_mul_lo_u32 {vr(r)}, {vr(r)}, {sr(sA)}",
                f"s_mov_b32 {sr(sA)}, {131072+128}", f"v_mov_b32 {vr(r+1)}, 0",
                ("vm", "TL", f"buffer_load_dword {vr(vTa)}, {vr(r)}, {sr(S_WS,4)}, {sr(sA)} offen"),
                ("vm", "TL", f"buffer_load_dword {vr(vTa)}, {vr(r+1)}, {sr(S_OUT,4)}, 0 offen"),
                ("vm", "TL", f"buffer_load_dword {vr(vTa)}, {vr(r+1)}, {sr(S_WS,4)}, {sr(sOwn)} offen offset:640"),
                ("vm", "TL", f"buffer_load_dword {vr(vTa)}, {vr(r+1)}, {sr(S_WO,4)}, 0 offen")]

    G = 34
    itd = opt.get("itdiag")
    fills = {(i, j): {g: [] for g in range(G)} for i in range(17) for j in range(3)}

    def F(i, g):
        i += g // (3 * G)
        g %= 3 * G
        return fills[(i, g // G)][g % G]

    def cost(lst):
        c = 0
        for x in lst:
            if isinstance(x, list):
                c += cost(x)
            elif isinstance(x, str):
                c += 0 if x.endswith(":") else (8 if x.startswith("v_exp") else 4)
            elif x[0] in ("vm", "ds"):
                c += 4
        return c

    def barrier(i):
        need = [f"V{i}"] + ([f"K{i+1}"] if (i < 15 and not (opt.get("kbar") and i > 0)) else [])
        if opt.get("itrt"):
            return [("wait", need, None), "s_barrier", f"v_writelane_b32 {vr(vDg)}, s100, {i}", f"v_writelane_b32 {vr(vDg)}, s88, {20+i}",
                    "s_memtime s[100:101]", "s_memrealtime s[88:89]"]
        if itd:
            return ["s_memtime s[100:101]", ("wait", need, "all"), "s_barrier", f"v_writelane_b32 {vr(vDg)}, s100, {i}",
                    f"v_writelane_b32 {vr(vDg)}, s88, {16+i}", "s_memtime s[88:89]"]
        return [("wait", need, None), "s_barrier"]

    for i in range(1, 16):
        for j in range(3):
            if (i, j) == (15, 2):
                continue
            f = fills[(i, j)]
            ex, cv, ors, fin_ = softmax_items(j)
            for e in range(16):
                f[2 * e].append(ex[e])
                if e & 1:
                    f[2 * e + 1].append(cv[e // 2])
            for k, g in enumerate((13, 21, 29)):
                f[g].append(ors[k])
            f[32] += fin_
            if (i, j) == (15, 1):
                f[33] += chk(i, j)
            else:
                F(i, G * (j + 1) + 1).extend(chk(i, j))
    bg = opt.get("bg", 2)
    dpos = [11, 23, G + 3, G + 15, G + 27, 2 * G + 9, 2 * G + 19, 2 * G + 29]
    for i in range(16):
        dm = (kvpieces(V, i + 2) if i + 2 < 16 else []) + (kvpieces(K, i + 3) if i + 3 < 16 else [])
        for n, it in enumerate(dm):
            g = dpos[n]
            if i == 0:
                g = [G + 3, G + 11, G + 19, G + 27, 2 * G + 3, 2 * G + 11, 2 * G + 19, 2 * G + 29][n]
            F(i, g - 1).extend(it[:2] if n % 4 == 0 else it[:1])
            F(i, g).insert(0, it[2])
            if opt.get("cap", 4) and i >= opt.get("capi", 8):
                F(i, g).insert(0, ("capkv", opt.get("cap", 4) - 1))
            if opt.get("capf") and opt.get("capf0", 6) <= i < opt.get("capf1", 10):
                F(i, g).insert(0, ("condcap", opt["capf"] - 1, f"s_bitcmp1_b32 {sr(sRot)}, 1", f"L_cc{i}_{n}"))
            elif opt.get("cap2") and i >= opt.get("cap2i", 0):
                F(i, g).insert(0, ("capkv", opt["cap2"] - 1))
    bud = opt.get("bud", 8)
    for i in range(16):
        if i > 0:
            F(i, bg).extend(barrier(i))
        reqs = [((bg + 1 if m < 8 else 16 + m) if i > 0 else G, G + 16 + (m & ~3) - (8 if i > 0 else 4), vread(i, m, h)) for m in range(16) for h in range(2)]
        if i < 15:
            reqs += [(G + n, 2 * G + (n & ~3) - 8, kread(i + 1, n)) for n in range(16)]
        cur = 0
        firstk = None
        for lo, hi, it in reqs:
            g = max(lo, cur)
            while g < hi and cost(F(i, g)) + 4 > (bud if i > 0 else 8):
                g += 1
            lst = F(i, g)
            if lst and isinstance(lst[0], tuple) and lst[0][0] in ("ds",):
                k = 0
                while k < len(lst) and isinstance(lst[k], tuple) and lst[k][0] == "ds":
                    k += 1
                lst.insert(k, it)
            else:
                lst.insert(0, it)
            cur = g
            if firstk is None and it[1].startswith("k"):
                firstk = g
        if opt.get("kbar") and 0 < i < 15:
            F(i, firstk - 1).extend([("wait", [f"K{i+1}"], None), "s_barrier"])
        for m in ((0, 8, 12) if i > 0 else (0, 4, 8, 12)):
            F(i, G + 16 + m - 1).append(("wait", None, [f"v{i}_{m + (7 if (i > 0 and m == 0) else 3)}"]))
        if i < 15:
            for n in range(0, 16, 4):
                F(i, 2 * G + n - 1).append(("wait", None, [f"k{i+1}_{n+3}"]))
    if opt.get("lt"):
        F(12, 2 * G + 11).extend([f"s_lshr_b32 {sr(sA)}, s2, 3", f"s_lshl_b32 {sr(sA)}, {sr(sA)}, 16", f"s_lshl_b32 {sr(sD)}, {sr(sW)}, 12",
                                  f"s_add_u32 {sr(sA)}, {sr(sA)}, {sr(sD)}", f"s_lshl_b32 {sr(sD)}, {sr(sKH)}, 21", f"s_add_u32 {sr(sA)}, {sr(sA)}, {sr(sD)}",
                                  f"v_lshl_add_u32 {vr(TM+6)}, {vr(vL)}, 6, {sr(sA)}"])
        g0, st = opt.get("lt0", G + 27), opt.get("lts", 24)
        for k in range(4):
            F(13, g0 + k * st).extend([("vm", "WP", f"global_load_dword {vr(TM+7)}, {vr(TM+6)}, s[80:81]{' nt' if opt['lt'] == 1 else ''}"),
                                       f"v_add_u32 {vr(TM+6)}, 0x4000, {vr(TM+6)}"])
    if opt.get("wtr"):
        npart, wt0 = opt["wtr"], opt.get("wt0", 1)
        sh = {2: 2, 4: 3, 8: 4}[npart]
        F(wt0, 2 * G + 11).extend([f"s_lshr_b32 {sr(sA)}, s2, 1", f"s_lshl_b32 {sr(sA)}, {sr(sA)}, 14", f"s_lshl_b32 {sr(sD)}, {sr(sW)}, 12",
                                   f"s_add_u32 {sr(sA)}, {sr(sA)}, {sr(sD)}", f"s_lshl_b32 {sr(sD)}, {sr(sKH)}, 21", f"s_add_u32 {sr(sA)}, {sr(sA)}, {sr(sD)}",
                                   f"v_lshrrev_b32 {vr(vTb)}, {sh}, {vr(vL)}", f"v_lshl_add_u32 {vr(vTb)}, {vr(vTb)}, 7, {sr(sA)}"])
        for k in range(npart):
            F(wt0 + k, 2 * G + 15).append(("vm", "WP", f"global_load_dword {vr(TM+7)}, {vr(vTb)}, s[80:81] offset:{k * 4096 // npart}"))
    if opt.get("wpf"):
        F(13, opt["wpf"]).extend([f"s_lshr_b32 {sr(sA)}, s2, 1", f"s_lshl_b32 {sr(sA)}, {sr(sA)}, 14", f"s_lshl_b32 {sr(sD)}, {sr(sW)}, 12",
                                  f"s_add_u32 {sr(sA)}, {sr(sA)}, {sr(sD)}", f"s_lshl_b32 {sr(sD)}, {sr(sKH)}, 21", f"s_add_u32 {sr(sA)}, {sr(sA)}, {sr(sD)}",
                                  f"v_lshl_add_u32 {vr(TM+6)}, {vr(vL)}, 6, {sr(sA)}",
                                  ("vm", "WP", f"global_load_dword {vr(TM+7)}, {vr(TM+6)}, s[80:81]")])
    if opt.get("tlb", 1):
        F(opt.get("tlb", 1), 2 * G + 13).extend(tlbtouch(vT0))
    F(6, 2 * G + 13).extend([f"v_mov_b32 {vr(TM+6)}, 0", ("vm", "NC", f"buffer_load_dwordx2 {vr(TM+4,2)}, {vr(TM+6)}, {sr(S_DBG,4)}, 0 offen")])
    F(10, 2 * G + 13).extend([("wait", ["NC"], None), f"v_readfirstlane_b32 {sr(sN)}, {vr(TM+4)}", f"v_readfirstlane_b32 {sr(sN+1)}, {vr(TM+5)}"])
    F(10, 2 * G + 15).extend([f"s_cmp_eq_u32 {sr(sN)}, 0", "s_cbranch_scc1 L_ncslow", "L_ncok:"])
    F(8, 2 * G + 13).extend([f"s_lshl_b32 {sr(sBt)}, {sr(sW)}, 14", f"s_mul_i32 {sr(sA)}, {sr(sMT)}, {6*TS}", f"s_add_u32 {sr(sA)}, {sr(sA)}, {sr(sBt)}",
                             f"s_lshl_b32 {sr(sBt)}, {sr(sKH)}, 16", f"s_add_u32 {sr(sA)}, {sr(sA)}, {sr(sBt)}",
                             f"s_add_u32 {sr(S_X)}, {sr(S_WS)}, {sr(sA)}", f"s_addc_u32 {sr(S_X+1)}, {sr(S_WS+1)}, 0",
                             f"s_mov_b32 {sr(S_X+2)}, {5*TS+16384}"])
    F(9, 2 * G + 13).extend([f"s_lshl_b32 {sr(sC)}, {sr(sB)}, 2", f"s_add_u32 {sr(sC)}, {sr(sC)}, {sr(sW)}",
                             f"s_mul_i32 {sr(sC)}, {sr(sC)}, {3*TS}", f"s_lshl_b32 {sr(sBt)}, {sr(sH)}, 12",
                             f"s_add_u32 {sr(sC)}, {sr(sC)}, {sr(sBt)}"])

    def norm(q):
        r = TM + 2 * q + 2
        out = [f"v_accvgpr_read_b32 {vr(r)}, {ar(LA+4*q)}", f"v_rcp_f32 {vr(r)}, {vr(r)}", "s_nop 0"]
        for jj in range(4):
            ob = OA + q * 32 + jj * 8
            out += [f"v_mul_f32 {vr(ob+e)}, {vr(ob+e)}, {vr(r)}" for e in range(8)] if opt.get("nmul") else \
                   [f"v_pk_mul_f32 {vr(ob+e,2)}, {vr(ob+e,2)}, {vr(r,2)} op_sel_hi:[1,0]" for e in range(0, 8, 2)]
            out += [f"v_cvt_pk_bf16_f32 {vr(ob+e)}, {vr(ob+2*e)}, {vr(ob+2*e+1)}" for e in range(4)]
            out.append(("vm", "ST", f"buffer_store_dwordx4 {vr(ob,4)}, {vr(vL16)}, {sr(S_WS,4)}, {sr(sC)} offen offset:{jj*1024} sc1"))
        out.append(f"s_add_u32 {sr(sC)}, {sr(sC)}, {TS}")
        return out

    f = {}
    spread(f, carry, 0, 6)
    if 8 in plan:
        spread(f, plan[8], 1, 16)
    a(("wait", None, ["k0_15"]))
    a.spine(qk(0, True), f)
    if qd:
        a(["s_memtime s[100:101]", "s_waitcnt lgkmcnt(0)", f"v_writelane_b32 {vr(vDg)}, s100, 8", f"v_writelane_b32 {vr(vDg)}, s88, 24",
           f"v_writelane_b32 {vr(vDg)}, s100, 25", f"s_lshl_b32 {sr(sA)}, s2, 2", f"s_add_u32 {sr(sA)}, {sr(sA)}, {sr(sW)}",
           f"s_lshl_b32 {sr(sA)}, {sr(sA)}, 8", f"s_add_u32 {sr(sA)}, {sr(sA)}, {WS_DIAG + (2<<20)}",
           f"v_lshlrev_b32 {vr(vT0)}, 2, {vr(vL)}", f"buffer_store_dword {vr(vDg)}, {vr(vT0)}, {sr(S_WS,4)}, {sr(sA)} offen untracked"])
    a(stamp())
    wplans = {0: {(13, 2): "D", (14, 0): "D", (14, 2): "D", (15, 0): "D", (15, 1): "DD"},
              1: {(13, 2): "D", (14, 0): "D", (14, 1): "D", (14, 2): "D", (15, 0): "DR", (15, 1): "DDR"},
              2: {(13, 2): "D", (14, 0): "D", (14, 1): "D", (14, 2): "DD", (15, 0): "RRD", (15, 1): "DDDR"},
              3: {(13, 2): "DD", (14, 0): "D", (14, 1): "DD", (14, 2): "DRR", (15, 0): "DDRR", (15, 1): "DDDDR"},
              4: {(13, 2): "DDD", (14, 1): "DDD", (14, 2): "RRRD", (15, 0): "DDRR", (15, 1): "DDDD"}}
    wplans[9] = {(15, 0): "DD", (15, 1): "DDD"}
    wplans[10] = {(14, 2): "DD", (15, 0): "DD", (15, 1): "DD"}
    wplans[11] = {(14, 1): "D", (14, 2): "DD", (15, 0): "DD", (15, 1): "DDR"}
    wplans[5] = {}
    wplans[6] = {(14, 2): "D", (15, 0): "D", (15, 1): "DD"}
    wpl = wplans.get(opt.get("wp", 1))
    il = opt.get("il", 0)
    ilsched = {}
    if il:
        n_il = opt.get("iln", 8)
        per = opt.get("ilp", 1)
        seq = []
        for k in range(n_il):
            seq.append("D" if k < 3 else "RD")
        for k in range(0, n_il, per):
            ilsched[(il + k // per, 2)] = "".join(seq[k:k + per])
        wplans[7] = {}
        wplans[8] = {(14, 2): "D", (15, 0): "D", (15, 1): "D"}
        wpl = wplans[opt.get("wp", 7)]
    avail = {((il, 2) if il else (13, 2)): ["A0", "A1", "A2"], (14, 1): ["B0", "B1", "B2"], (15, 1): ["B3", "B4"]}
    for i in range(16):
        for j in range(3):
            f = fills[(i, j)]
            jn, jp = (j + 1) % 3, (j + 2) % 3
            if (i, j) == (0, 0):
                sf = softmax_first(0)
                spread(f, sf[:44], 4, 16)
                f[15] += barrier(0)
                a.spine(qk(1, True), {g: v for g, v in f.items() if g < 16})
                a(sf[44:])
                continue
            if (i, j) == (15, 2):
                ex, cv, ors, fin_ = softmax_items(2)
                lin = []
                for e in range(16):
                    lin.append(ex[e])
                    if e >= 2 and e % 2 == 0:
                        lin.append(cv[e // 2 - 1])
                    if e in (7, 11):
                        lin.append(ors[(e - 7) // 4])
                lin += [ors[2], cv[7]] + fin_
                f = {}
                spread(f, lin, 0, 17)
                spread(f, norm(0), 3, 18)
                a.spine(pv(15, 1, sumfirst=True), f)
                continue
            if i == 0:
                ws_ = {g: [x for x in v if isinstance(x, tuple) and x[0] == "wait"] for g, v in f.items()}
                for g in f:
                    f[g] = [x for x in f[g] if not (isinstance(x, tuple) and x[0] == "wait")]
                spread(f, softmax_first(j), 2, 34)
                for g in f:
                    f[g] += ws_[g]
            free.extend(avail.get((i, j), []))
            if (i, j) in ilsched:
                its = []
                for ch in ilsched[(i, j)]:
                    its += D(free.pop(0), True) if ch == "D" else Rd()
                ok_g = [g for g in range(10, 33) if g not in (18, 28)]
                for n_, it in enumerate(its):
                    f[ok_g[(n_ * len(ok_g)) // len(its)]].append(it)
                assert rnext[0] <= 5
            if (i, j) in wpl:
                tail = f[33]; f[33] = []
                spread(f, ops(wpl[(i, j)]), 3, 33)
                assert rnext[0] <= 5
                f[33] += tail
            a.spine(qk(jn, first=(i == 0 and j < 2)) + pv(i - 1 if j == 0 else i, jp, first=(i == 0 or (i == 1 and j == 0))), f)
    a(chk(15, 2))
    a(stamp())
    if itd:
        a(["s_waitcnt lgkmcnt(0)", f"v_writelane_b32 {vr(vDg)}, s88, {36 if opt.get('itrt') else 32}", f"v_writelane_b32 {vr(vDg)}, s100, 16", f"s_lshl_b32 {sr(sA)}, s2, 2", f"s_add_u32 {sr(sA)}, {sr(sA)}, {sr(sW)}",
           f"s_lshl_b32 {sr(sA)}, {sr(sA)}, 8", f"s_add_u32 {sr(sA)}, {sr(sA)}, {WS_DIAG + (2<<20)}",
           f"v_lshlrev_b32 v2, 2, {vr(vL)}", f"buffer_store_dword {vr(vDg)}, v2, {sr(S_WS,4)}, {sr(sA)} offen untracked"])

    def wstep(dlim, rlim=NRK):
        out = []
        if (len(free) < 2 or dnext[0] >= dlim or dnext[0] - rnext[0] >= opt.get("rlag", 9)) and rnext[0] < rlim and rnext[0] < dnext[0]:
            out += Rd()
        if dnext[0] < dlim and free:
            out += D(free.pop(0))
        return out

    def wsteps(n, rlim):
        out = []
        for _ in range(n):
            out += wstep(NK, rlim)
        return out
    f = {}
    e0 = wsteps(opt.get("fd", 0), 11)
    if e0:
        spread(f, e0, 0, 18)
    spread(f, norm(1), 3, 18)
    a.spine(pv(15, 2, sumfirst=True), f)
    a(mix(["s_nop 3"] + norm(2), wsteps(opt.get("fn", 0), 15)))
    a(stamp())
    a(wsteps(opt.get("nack", 3), NRK))
    a(pubprep())
    a(("wait", ["ST"], None))
    a("s_barrier")
    free.append("B5")
    a(publish())
    a(stamp())
    steps = []
    while dnext[0] < NK or rnext[0] < opt.get("rpre", 4):
        steps.append(wstep(NK))
    pp = min(opt.get("pp", 2), len(steps))
    ACCS = [16, 112]
    RO = 64
    VOS = [[160, 161, 162], [163, 164, 165]]
    vPart, vRed, vRd, vOut, vFl = 166, 167, 168, 169, 170
    RB = 176
    PR = 224
    a([f"s_xor_b32 {sr(sBt)}, {sr(sKH)}, 1", f"s_mul_i32 {sr(sBt)}, {sr(sBt)}, {3*TS}", f"s_mul_i32 {sr(sC)}, {sr(sKH)}, {3*TS}",
       f"v_add_u32 {vr(VOS[0][0])}, {sr(sBt)}, {vr(vL16)}", f"v_add_u32 {vr(VOS[1][0])}, {sr(sC)}, {vr(vL16)}"])
    a([f"v_add_u32 {vr(VOS[p][t])}, {t*TS}, {vr(VOS[p][0])}" for p in range(2) for t in (1, 2)])
    a([f"v_add_u32 {vr(vRed)}, {sr(sLl)}, {vr(vL16)}", f"s_lshl_b32 {sr(sC)}, {sr(sW)}, 10", f"s_add_u32 {sr(sC)}, {sr(sC)}, {QEX}",
       f"v_add_u32 {vr(vRd)}, {sr(sC)}, {vr(vL16)}", f"s_mul_i32 {sr(sC)}, {sr(sW)}, 3072", f"v_add_u32 {vr(vPart)}, {sr(sC)}, {vr(vL16)}",
       f"v_and_b32 {vr(vOut)}, 15, {vr(vL)}", f"v_lshlrev_b32 {vr(vOut)}, 10, {vr(vOut)}", f"v_lshrrev_b32 v6, 4, {vr(vL)}",
       f"v_lshl_add_u32 {vr(vOut)}, v6, 3, {vr(vOut)}"])
    a([f"v_and_b32 v7, 15, {vr(vL)}", f"s_cmp_eq_u32 {sr(sW)}, 0", f"s_cselect_b32 {sr(sBt)}, {sr(sOwn)}, {WS_SIZE}",
       f"v_lshl_add_u32 v7, v7, 3, {sr(sBt)}"])
    vP = 172
    a(steps[:len(steps) - pp])
    ld1 = f"buffer_load_dwordx2 {vr(vP,2)}, v7, {sr(S_WS,4)}, 0 offen sc1"
    a(("vm", "PL", ld1))
    a(steps[len(steps) - pp:])
    a(stamp())

    def pollblk(name, tag, ld, slp):
        cmp_ = f"v_cmp_ne_u64 vcc, {sr(sN,2)}, {vr(vP,2)}"
        a(f"s_cmp_lg_u32 {sr(sW)}, 0")
        a(f"s_cbranch_scc1 {name}_ok")
        sv = a.vmdone
        a(("wait", [tag], None))
        a.vmdone = sv
        a(cmp_)
        a(f"s_cbranch_vccz {name}_ok")
        a("s_mov_b32 s13, 0x100000")
        a(f"{name}:")
        a(ld + " untracked")
        a("s_waitcnt vmcnt(0)")
        a(cmp_)
        a(f"s_cbranch_vccz {name}_ok")
        if slp:
            a(f"s_sleep {slp}")
        a("s_sub_u32 s13, s13, 1")
        a(f"s_cbranch_scc0 {name}")
        a(f"{name}_ok:")
        a("s_barrier")
    pollblk("L_poll2", "PL", ld1, opt.get("slp", 2))
    a(stamp())
    D_ = 4
    CH = 2
    sOf2, sPw, sPr, sPf = 46, 48, 41, 12

    deep = opt.get("deep", 0)

    def oslot(j):
        if deep and 24 <= j < 28:
            return ACCS[0] + 12 * (j - 24)
        return RO + 12 * (j % D_)

    def oload(j, q):
        b = oslot(j)
        so = sOff if (j % CH == 0) else sOf2
        return [("vm", f"O{j}_{q}", f"buffer_load_dwordx4 {vr(b+4*q,4)}, {vr(VOS[j//16][q])}, {sr(S_X,4)}, {sr(so)} offen sc1")]

    def adv():
        return [f"s_add_u32 {sr(sOff)}, {sr(sOf2)}, 1024", f"s_and_b32 {sr(sOff)}, {sr(sOff)}, 0x3fff",
                f"s_add_u32 {sr(sOf2)}, {sr(sOff)}, 1024", f"s_and_b32 {sr(sOf2)}, {sr(sOf2)}, 0x3fff"]
    a([f"s_add_u32 {sr(sOf2)}, {sr(sOff)}, 1024", f"s_and_b32 {sr(sOf2)}, {sr(sOf2)}, 0x3fff"])
    for j0 in range(0, D_, CH):
        for q in range(3):
            for kk in range(CH):
                a(oload(j0 + kk, q))
        a(adv())
    a([f"s_mul_i32 {sr(sPw)}, s2, 12288", f"s_add_u32 {sr(sPw)}, {sr(sPw)}, {WS_PART}",
       f"s_xor_b32 {sr(sPf)}, s2, 1", f"s_mul_i32 {sr(sPr)}, {sr(sPf)}, 12288", f"s_add_u32 {sr(sPr)}, {sr(sPr)}, {WS_PART}",
       f"s_mul_i32 {sr(sPf)}, {sr(sPf)}, {FST}", f"s_add_u32 {sr(sPf)}, {sr(sPf)}, {WS_FLG}",
       f"s_cmp_eq_u32 {sr(sW)}, 0", f"s_cselect_b32 {sr(sBt)}, {sr(sPf)}, {WS_SIZE}", f"v_mov_b32 {vr(vFl)}, {sr(sBt)}"])

    ld2 = f"buffer_load_dwordx2 {vr(vP,2)}, {vr(vFl)}, {sr(S_WS,4)}, 0 offen offset:256 sc1"

    def redwrite(p):
        return [("ds", f"z{p}", f"ds_write_b128 {vr(vRed)}, {vr(ACCS[p]+4*idx,4)} offset:{idx*1024}") for idx in range(12)]

    def redread(p):
        return [("ds", f"y{p}_{q}", f"ds_read_b128 {vr(RB+(q*4+w)*4,4)}, {vr(vRd)} offset:{w*15360 + q*4096}") for q in range(3) for w in range(4)]

    def redadd(p, q, pk):
        b = RB + q * 16
        out = [("wait", None, [f"y{p}_{q}"])]
        if pk:
            out += [f"v_pk_add_f32 {vr(b+o+e,2)}, {vr(b+o+e,2)}, {vr(b+o+4+e,2)}" for e in (0, 2) for o in (0, 8)]
            out += [f"v_pk_add_f32 {vr(b+e,2)}, {vr(b+e,2)}, {vr(b+8+e,2)}" for e in (0, 2)]
        else:
            out += [f"v_add_f32 {vr(b+o+e)}, {vr(b+o+e)}, {vr(b+o+4+e)}" for e in range(4) for o in (0, 8)]
            out += [f"v_add_f32 {vr(b+e)}, {vr(b+e)}, {vr(b+8+e)}" for e in range(4)]
        return out
    extra = {16: [[]] * 4 + redwrite(0),
             18: [[("wait", None, ["z0"]), "s_barrier"]] + redread(0),
             20: [x for q in range(3) for x in redadd(0, q, False) +
                  [("vm", "S2", f"buffer_store_dwordx4 {vr(RB+q*16,4)}, {vr(vPart)}, {sr(S_WS,4)}, {sr(sPw)} offen offset:{q*1024} sc1")]]}
    ew = opt.get("ew", 2)
    rw1 = redwrite(1)
    if ew:
        extra[30] = [[]] * 8 + rw1[0:4] + [[]] * 2 + rw1[4:8]
        rw1 = rw1[8:]
        rw0 = redwrite(0)
        extra[14] = [[]] * 8 + rw0[0:4] + [[]] * 2 + rw0[4:8]
        if ew == 1:
            extra[16] = [[]] * 3 + [x for w_ in rw0[8:] for x in (w_, [])]
        else:
            extra[16] = [[]] * 3 + rw0[8:] + [[]] * 4 + [extra[18][0]] + [extra[18][1 + 2*k: 3 + 2*k] for k in range(6)]
            extra[18] = extra.pop(20)
    if opt.get("xq"):
        extra = {16: [[]] * 6 + redwrite(0) + [[]] * 6 + extra[18], 18: extra[20]}
    jsig, jpl, jck = opt.get("jsig", 24), opt.get("jpl", 28), opt.get("jck", 32)
    for j0 in range(0, 32, CH):
        p = j0 // 16
        if j0 in (2, 8, 16, 20, 24, 26, 28):
            a(stamp(True))
        if j0 == jsig:
            a(("wait", ["S2"], None))
            a("s_barrier")
            a(w0only("L_c4", 1, [f"buffer_store_dwordx2 {vr(vT0,2)}, {vr(vL16)}, {sr(S_WS,4)}, {sr(sOwn)} offen offset:256 sc1 untracked"]))
        if j0 == jpl:
            a(("vm", "P2", ld2))
        if j0 == jck:
            pollblk("L_poll3", "P2", ld2, 1)
            a([("vm", f"PR{q}", f"buffer_load_dwordx4 {vr(PR+4*q,4)}, {vr(vPart)}, {sr(S_WS,4)}, {sr(sPr)} offen offset:{q*1024} sc1") for q in range(3)])
        if deep and j0 == 20:
            for jb in (24, 26):
                for q in range(3):
                    for kk in range(CH):
                        a(oload(jb + kk, q))
                a(adv())
        nxt = j0 + D_ + (4 if (deep and j0 >= 20) else 0)
        rd = list(extra.get(j0, []))
        for kk in range(CH):
            if rnext[0] < NK:
                rd += Rd()
        assert rnext[0] >= min(NK, j0 + 2 * CH)
        npq = -(-len(rd) // 18)
        for q in range(3):
            a(("wait", [f"O{j0+kk}_{q}" for kk in range(CH)], [f"t{(j0+kk)%16}" for kk in range(CH)]))
            for t in range(4):
                acc = vr(ACCS[p] + (q * 4 + t) * 4, 4)
                for kk in range(CH):
                    j = j0 + kk
                    b = oslot(j)
                    a(f"{MF} {acc}, {wreg(4*(j%16)+t)}, {vr(b+4*q,4)}, {'0' if j % 16 == 0 else acc}")
                    if t < 3:
                        for _ in range(npq):
                            if rd:
                                a(rd.pop(0))
            if nxt < 32:
                for kk in range(CH):
                    a(oload(nxt + kk, q))
        a(adv())
    a(stamp())
    a("s_nop 3")
    a(rw1)
    a(("wait", None, ["z1"]))
    if jck >= 32:
        pollblk("L_poll3", "P2", ld2, 1)
        a([("vm", f"PR{q}", f"buffer_load_dwordx4 {vr(PR+4*q,4)}, {vr(vPart)}, {sr(S_WS,4)}, {sr(sPr)} offen offset:{q*1024} sc1") for q in range(3)])
    else:
        a("s_barrier")
    a(redread(1))
    a([f"s_lshl_b32 {sr(sOff)}, {sr(sMT)}, 1", f"s_add_u32 {sr(sOff)}, {sr(sOff)}, {sr(sKH)}", f"s_mul_i32 {sr(sOff)}, {sr(sOff)}, {48*1024}",
       f"s_lshl_b32 {sr(sA)}, {sr(sNT)}, 7", f"s_add_u32 {sr(sOff)}, {sr(sOff)}, {sr(sA)}",
       f"s_lshl_b32 {sr(sA)}, {sr(sW)}, 5", f"s_add_u32 {sr(sOff)}, {sr(sOff)}, {sr(sA)}"])
    for q in range(3):
        a(redadd(1, q, True))
    for q in range(3):
        b = RB + q * 16
        a(("wait", [f"PR{q}"], None))
        a([f"v_pk_add_f32 {vr(b+e,2)}, {vr(b+e,2)}, {vr(PR+4*q+e,2)}" for e in (0, 2)])
        a(f"v_cvt_pk_bf16_f32 {vr(b)}, {vr(b)}, {vr(b+1)}")
        a(f"v_cvt_pk_bf16_f32 {vr(b+1)}, {vr(b+2)}, {vr(b+3)}")
        a(("vm", "out", f"buffer_store_dwordx2 {vr(b,2)}, {vr(vOut)}, {sr(S_OUT,4)}, {sr(sOff)} offen"))
        if q < 2:
            a(f"s_add_u32 {sr(sOff)}, {sr(sOff)}, 16384")
    if diag:
        a("s_waitcnt vmcnt(0)")
        a(stamp())
        a(f"s_memrealtime {sr(sSt + 2*nstamp[0], 2)}")
        a("s_waitcnt lgkmcnt(0)")
        n = nstamp[0]
        print("nstamps", n, file=sys.stderr)
        if opt.get("probe") is not None:
            pa, pb, mult = opt["probe"] // 100, opt["probe"] % 100, opt.get("mult", 1)
            a(f"s_sub_u32 s3, s{60+2*pb}, s{60+2*pa}")
            a(f"s_mul_i32 s3, s3, {mult}")
            a(f"s_add_u32 s3, s3, s{60+2*n}")
            a("L_spin:")
            a("s_sleep 4")
            a("s_memrealtime s[12:13]")
            a("s_waitcnt lgkmcnt(0)")
            a("s_sub_u32 s12, s12, s3")
            a("s_cmp_lt_i32 s12, 0")
            a("s_cbranch_scc1 L_spin")
            a("s_endpgm")
        if opt.get("hdiag"):
            words = [1, 2, 3, 4, 5, 6, 7, 9, 10, 11, 12, 13, 14, 15]
            a("v_mov_b32 v20, 0")
            a("v_mov_b32 v21, 256")
            a("s_not_b32 s3, s60")
            a("v_writelane_b32 v20, s3, 0")
            for i in range(n):
                a(f"v_writelane_b32 v20, s{60+2*i}, {i+1}")
            for i in range(n + 1):
                a(f"v_writelane_b32 v21, {words[i]*4}, {i}")
            a(f"buffer_atomic_umax v20, v21, {sr(S_DBG,4)}, 0 offen sc1 untracked")
            a("s_endpgm")
        a("v_mov_b32 v20, 0")
        for i in range(2 * n + 4):
            a(f"v_writelane_b32 v20, s{58+i}, {i}")
        a(f"s_lshl_b32 {sr(sA)}, s2, 2")
        a(f"s_add_u32 {sr(sA)}, {sr(sA)}, {sr(sW)}")
        a(f"s_lshl_b32 {sr(sA)}, {sr(sA)}, 8")
        a(f"s_add_u32 {sr(sA)}, {sr(sA)}, {WS_DIAG}")
        a(f"v_lshlrev_b32 v21, 2, {vr(vL)}")
        a(f"buffer_store_dword v20, v21, {sr(S_WS,4)}, {sr(sA)} offen untracked")
    a("L_end:")
    a("s_endpgm")
    a("L_ncslow:")
    a("s_mov_b32 s13, 0x100000")
    a("L_ncs2:")
    a("s_sleep 8")
    a(f"buffer_load_dwordx2 {vr(TM+4,2)}, {vr(TM+6)}, {sr(S_DBG,4)}, 0 offen offset:128 sc1 untracked")
    a("s_waitcnt vmcnt(0)")
    a(f"v_readfirstlane_b32 {sr(sN)}, {vr(TM+4)}")
    a(f"v_readfirstlane_b32 {sr(sN+1)}, {vr(TM+5)}")
    a(f"s_cmp_lg_u32 {sr(sN)}, 0")
    a("s_cbranch_scc1 L_ncok")
    a("s_sub_u32 s13, s13, 1")
    a("s_cbranch_scc0 L_ncs2")
    a("s_branch L_ncok")
    for i, j in stubs:
        a(f"L_st{i}_{j}:")
        a(f"s_call_b64 {sr(sRet,2)}, L_rare{j}")
        a(f"s_branch L_bk{i}_{j}")
    for j in range(3):
        s_, P, m = SB + 16 * j, PB + 8 * j, TM
        a(f"L_rare{j}:")
        a("s_nop 7")
        a(rowmax(j))
        a(f"v_add_f32 {vr(m)}, 0x41000000, {vr(m)}")
        a(f"v_max_f32 {vr(m)}, 0, {vr(m)}")
        for r in range(16):
            a(f"v_sub_f32 {vr(s_+r)}, {vr(s_+r)}, {vr(m)}")
        for r in range(16):
            a(f"v_exp_f32 {vr(s_+r)}, {vr(s_+r)}")
        a(f"v_sub_f32 {vr(vT0)}, 0, {vr(m)}")
        a(f"v_exp_f32 {vr(vT0)}, {vr(vT0)}")
        for r in range(4):
            a(f"v_sub_f32 {vr(CI+4*j+r)}, {vr(CI+4*j+r)}, {vr(m)}")
        for r in range(8):
            a(f"v_cvt_pk_bf16_f32 {vr(P+r)}, {vr(s_+2*r)}, {vr(s_+2*r+1)}")
        for r in range(32):
            a(f"v_mul_f32 {vr(OA+32*j+r)}, {vr(OA+32*j+r)}, {vr(vT0)}")
        for r in range(4):
            a(f"v_accvgpr_read_b32 {vr(vT1)}, {ar(LA+4*j+r)}")
            a(f"v_mul_f32 {vr(vT1)}, {vr(vT1)}, {vr(vT0)}")
            a(f"v_accvgpr_write_b32 {ar(LA+4*j+r)}, {vr(vT1)}")
        a("s_nop 1")
        a(f"s_setpc_b64 {sr(sRet,2)}")
    a("L_codeend:")


def generate(opt):
    k = f"{NAME}_kernel"
    out = f"""; GQA block: q = x@wq, softmax(q k^T / sqrt(128)) v, @wo  -- one fused launch, 256 workgroups (one per (batch, head)).
; @launch grid=(256,1,1) block=(256,1,1) lds={LDS}
.amdgcn_target "amdgcn-amd-amdhsa--gfx950"
.text
.globl {k}
.p2align 8
.type {k},@function
"""
    a = Em()
    gen(a, opt)
    out += a.text()
    out += f""".section .rodata,"a"
.p2align 6
.amdhsa_kernel {k}
  .amdhsa_next_free_vgpr 512
  .amdhsa_next_free_sgpr 102
  .amdhsa_accum_offset 256
  .amdhsa_group_segment_fixed_size 0
  .amdhsa_kernarg_size 64
  .amdhsa_user_sgpr_count 2
  .amdhsa_user_sgpr_kernarg_segment_ptr 1
  .amdhsa_system_sgpr_workgroup_id_x 1
  .amdhsa_float_denorm_mode_32 3
.end_amdhsa_kernel
"""
    return out


if __name__ == "__main__":
    opt = {}
    path = f"cdna_kernels/{NAME}.s"
    for arg in sys.argv[1:]:
        if arg.startswith("-o="):
            path = arg[3:]
        elif "=" in arg:
            k, v = arg.split("=")
            opt[k] = int(v)
        else:
            opt[arg] = True
    txt = generate(opt)
    open(path, "w").write(txt)
    import hazard
    errs = hazard.check(txt)
    print("wrote", path, "hazards", len(errs))
    for e in errs[:20]:
        print("  ", e)
```

```python
import sys
import math
from gen1 import vr, ar, sr, f32bits, NAME
from gen7 import Em, spread

MF = "v_mfma_f32_16x16x32_bf16"
PS = 1056
KSZ = 16 * PS
SLOT = 2 * KSZ
WPS = 1040
WQSZ = 16 * WPS
QBSZ = WQSZ + 24 * PS
QB = {2: SLOT, 0: SLOT + QBSZ, 1: SLOT + 2 * QBSZ}
QEX = 3 * SLOT
LDS = 163840
WS_FLG = 16 << 20
FST = 1152
PSTR = 12288 + 384
WS_PART = (16 << 20) + (512 << 10)
WS_DIAG = 32 << 20
WS_SIZE = 64 << 20
TS = 131072 + 384
SCALE = math.log2(math.e) / math.sqrt(128.0)


def gen(a, opt):
    diag = opt.get("diag", False)
    S_X, S_WQ, S_K, S_V, S_WO, S_WS, S_DBG, S_OUT = 16, 20, 24, 28, 32, 36, 4, 8
    sW, sB, sH, sKH = 40, 43, 44, 42
    sOwn, sMask, sG, sRet = 45, 47, 49, 50
    sKl, sLb, sD = 52, 53, 54
    sA, sBt, sC = 55, 56, 57
    sSt = 60
    sXld, sWld, sRot, sXs, sWs = 91, 93, 94, 95, 96
    sMT, sNT, sOff, sOffW, sLl, sFl = 97, 98, 99, 14, 90, 15
    vL16, vL, vDmaKV, vBE, vDmaX = 0, 1, 2, 3, 4
    vK = [5, 6]
    vV = [7, 8]
    vTa, vTb = 9, 10
    vMx, vT0, vT1, vBO, vDg = 11, 12, 13, 14, 15
    OA = 16
    QF = 112
    SB = 160
    PB = 208
    CI = 232
    ET = 244
    TM = 248
    vX = [184, 185, 186]
    vW = [187, 188, 189]
    vDX = [190, 191, 192, 193, 194, 195]
    vDW = [196, 197, 198, 199]
    VO = [0, 5, 6]
    KF, VF, LA, ONES = 176, 112, 240, 252
    nt = " nt"
    nstamp = [0]

    scnt = [0]

    def stamp(extra=False):
        if not extra:
            scnt[0] += 1
            if opt.get("odiag") and scnt[0] in (2, 3, 4, 5, 6, 7, 8):
                return []
        elif not opt.get("odiag"):
            return []
        if diag:
            r = f"{'s_memrealtime' if opt.get('rt') else 's_memtime'} {sr(sSt + 2 * nstamp[0], 2)}"
            nstamp[0] += 1
            return [r]
        return []

    a(f"{NAME}_kernel:")
    a("s_cmp_ge_u32 s2, 256")
    a("s_cbranch_scc1 L_end")
    a("s_load_dwordx8 s[72:79], s[0:1], 0")
    a("s_load_dwordx8 s[80:87], s[0:1], 32")
    if diag:
        a(f"s_memrealtime {sr(58, 2)}")
    a(stamp())
    a(f"v_lshrrev_b32 v15, 6, v0")
    a(f"v_and_b32 {vr(vL)}, 63, v0")
    a(f"s_and_b32 {sr(sA)}, s2, 7")
    a(f"v_readfirstlane_b32 {sr(sW)}, v15")
    a(f"s_lshl_b32 {sr(sA)}, {sr(sA)}, 2")
    a(f"s_bfe_u32 {sr(sBt)}, s2, 0x20003")
    a(f"s_add_u32 {sr(sH)}, {sr(sA)}, {sr(sBt)}")
    a(f"s_lshr_b32 {sr(sB)}, s2, 5")
    if opt.get("hmap", 0) == 2:
        a(f"s_and_b32 {sr(sH)}, s2, 31")
    if opt.get("hmap", 0) == 4:
        a(f"s_bfe_u32 {sr(sB)}, s2, 0x30003")
        a(f"s_lshr_b32 {sr(sBt)}, s2, 6")
        a(f"s_add_u32 {sr(sH)}, {sr(sA)}, {sr(sBt)}")
    if opt.get("hmap", 0) == 3:
        a(f"s_and_b32 {sr(sB)}, s2, 1")
        a(f"s_lshl_b32 {sr(sB)}, {sr(sB)}, 2")
        a(f"s_add_u32 {sr(sB)}, {sr(sB)}, {sr(sBt)}")
        a(f"s_and_b32 {sr(sH)}, s2, 6")
        a(f"s_lshl_b32 {sr(sH)}, {sr(sH)}, 2")
        a(f"s_lshr_b32 {sr(sBt)}, s2, 5")
        a(f"s_add_u32 {sr(sH)}, {sr(sH)}, {sr(sBt)}")
    a(f"s_mul_i32 {sr(sRot)}, {sr(sBt)}, {opt.get('roth', 2)}")
    a(f"s_add_u32 {sr(sRot)}, {sr(sRot)}, {sr(sB)}")
    a(f"s_and_b32 {sr(sRot)}, {sr(sRot)}, {opt.get('rot2', 3)}")
    a(f"v_and_b32 v15, 3, {vr(vL)}")
    a(f"v_lshlrev_b32 v14, 4, v15")
    a(f"v_lshrrev_b32 v12, 4, {vr(vL)}")
    a(f"v_lshl_add_u32 v11, v12, 6, v14")
    a(f"v_bfe_u32 v13, {vr(vL)}, 2, 2")
    a(f"v_lshl_add_u32 {vr(vDmaKV)}, v13, 8, v11")
    a(f"v_lshl_add_u32 {vr(vDW[0])}, v13, 13, v11")
    a(f"v_lshrrev_b32 v10, 5, {vr(vL)}")
    a(f"v_lshl_add_u32 v11, v10, 6, v14")
    a(f"v_bfe_u32 v9, {vr(vL)}, 2, 3")
    a(f"v_lshl_add_u32 {vr(vDmaX)}, v9, 10, v11")
    a(f"s_mul_i32 {sr(sA)}, {sr(sW)}, {16*8192}")
    a(f"v_add_u32 {vr(vDW[0])}, {sr(sA)}, {vr(vDW[0])}")
    for p in range(1, 4):
        a(f"v_add_u32 {vr(vDW[p])}, {p*(4*8192 - WPS)}, {vr(vDW[0])}")
    a(f"s_mul_i32 {sr(sA)}, {sr(sW)}, {6*8192}")
    a(f"v_add_u32 {vr(vDX[0])}, {sr(sA)}, {vr(vDmaX)}")
    for p in range(1, 6):
        a(f"v_add_u32 {vr(vDX[p])}, {p*8192 - (p%3)*PS}, {vr(vDX[0])}")
    a(f"s_mul_i32 {sr(sXld)}, {sr(sW)}, {6*PS}")
    a(f"s_lshl_b32 {sr(sWld)}, {sr(sW)}, 12")
    sWq = 92
    a(f"s_mul_i32 {sr(sWq)}, {sr(sW)}, {4*WPS}")
    a(f"s_mul_i32 {sr(sA)}, {sr(sB)}, 196608")
    a(f"s_lshl_b32 {sr(sBt)}, {sr(sH)}, 8")
    a(f"s_mov_b32 {sr(S_X+2)}, 196608")
    a(f"s_mov_b32 {sr(S_X+3)}, 0x20000")
    a(f"s_sub_u32 {sr(S_WQ+2)}, 0x400000, {sr(sBt)}")
    a(f"s_mov_b32 {sr(S_WQ+3)}, 0x20000")
    a("s_waitcnt lgkmcnt(0)")
    a(f"s_add_u32 {sr(S_X)}, s72, {sr(sA)}")
    a(f"s_addc_u32 {sr(S_X+1)}, s73, 0")
    a(f"s_add_u32 {sr(S_WQ)}, s78, {sr(sBt)}")
    a(f"s_addc_u32 {sr(S_WQ+1)}, s79, 0")

    def qgroup(s, nop=False):
        base = QB[s % 3]
        items = []
        for p in range(4):
            pre = []
            if p == 0:
                pre = [f"{'s_xor_b32' if opt.get('xr') else 's_add_u32'} {sr(sXs)}, {sr(sRot)}, {s}",
                       f"s_add_u32 m0, {sr(sWq)}, {base}",
                       f"s_and_b32 {sr(sXs)}, {sr(sXs)}, 7",
                       f"s_lshl_b32 {sr(sWs)}, {sr(sXs)}, 19"]
            post = [f"s_lshl_b32 {sr(sXs)}, {sr(sXs)}, 7"] if p == 0 else []
            if p == 3:
                post = [f"s_add_u32 m0, {sr(sXld)}, {base + WQSZ}"]
            items.append(pre + [("vm", f"Q{s}", f"buffer_load_dwordx4 {vr(vDW[p])}, {sr(S_WQ,4)}, {sr(sWs)} offen offset:{p*WPS}{' nt' if opt.get('ntq', 0) & 1 else ''} lds")] + post)
        for p in range(6):
            pre = ["s_nop 0"] if (nop and p in (0, 3)) else []
            post = [f"s_add_u32 m0, m0, {3*PS}"] if p == 2 else []
            items.append(pre + [("vm", f"Q{s}", f"buffer_load_dwordx4 {vr(vDX[p])}, {sr(S_X,4)}, {sr(sXs)} offen offset:{(p%3)*PS} lds")] + post)
        return items

    def kvpieces(isK, g, ps=range(4)):
        items = []
        for p in ps:
            items.append([f"s_add_u32 m0, {sr(sKl)}, {(g%3)*SLOT + (0 if isK else KSZ) + p*32}",
                          f"s_mov_b32 {sr(sG)}, {g*16384}",
                          ("vm", ("K" if isK else "V") + str(g),
                           f"buffer_load_dwordx4 {vr(vDmaKV)}, {sr(S_K if isK else S_V,4)}, {sr(sG)} offen offset:{p*1024}{nt} lds")])
        return items

    def w0only(lbl, mask, body):
        return [f"s_cmp_lg_u32 {sr(sW)}, 0", f"s_cbranch_scc1 {lbl}",
                (f"s_mov_b64 exec, {mask}" if mask == 1 else "s_mov_b32 exec_hi, 0")] + body + ["s_mov_b64 exec, -1", f"{lbl}:"]

    pw4 = opt.get("pw4", 0)
    PFO = 512
    sN = 92

    def mknonce():
        return [f"s_or_b32 {sr(sA)}, s2, {sr(sW)}", f"s_cmp_lg_u32 {sr(sA)}, 0", "s_cbranch_scc1 L_c1", "s_mov_b64 exec, 3",
                "s_memrealtime s[12:13]", f"v_lshlrev_b32 v8, 7, {vr(vL)}", "s_waitcnt lgkmcnt(0)", "s_or_b32 s12, s12, 1",
                f"v_mov_b32 {vr(TM+4)}, s12", f"v_mov_b32 {vr(TM+5)}, s13",
                f"buffer_store_dwordx2 {vr(TM+4,2)}, v8, {sr(S_DBG,4)}, 0 offen sc1 untracked", "s_mov_b64 exec, -1", "L_c1:"]

    def publish():
        return [f"s_cmp_lg_u32 {sr(sW)}, 0", "s_cbranch_scc1 L_c3", "s_mov_b64 exec, 0xffff",
                f"buffer_store_dwordx2 {vr(vT0,2)}, {vr(vMx)}, {sr(S_WS,4)}, {sr(sFl)} offen sc1 untracked",
                "s_mov_b64 exec, -1", "L_c3:"]

    def pubprep():
        return [f"v_and_b32 {vr(vMx)}, 1, {vr(vL)}", f"v_lshrrev_b32 {vr(vT0)}, 1, {vr(vL)}", f"v_lshl_add_u32 {vr(vMx)}, {vr(vT0)}, 2, {vr(vMx)}",
                f"v_mul_u32_u24 {vr(vMx)}, {8*FST}, {vr(vMx)}",
                f"s_and_b32 {sr(sFl)}, {sr(sB)}, 6", f"s_lshr_b32 {sr(sA)}, {sr(sH)}, 4", f"s_add_u32 {sr(sFl)}, {sr(sFl)}, {sr(sA)}",
                f"s_and_b32 {sr(sA)}, {sr(sB)}, 1", f"s_lshl_b32 {sr(sA)}, {sr(sA)}, 4", f"s_add_u32 {sr(sFl)}, {sr(sFl)}, {sr(sA)}",
                f"s_mul_i32 {sr(sFl)}, {sr(sFl)}, {FST}", f"s_and_b32 {sr(sA)}, {sr(sH)}, {3 if pw4 else 15}", f"s_lshl_b32 {sr(sA)}, {sr(sA)}, 3",
                f"s_add_u32 {sr(sFl)}, {sr(sFl)}, {sr(sA)}", f"s_and_b32 {sr(sA)}, {sr(sH)}, {12 if pw4 else 0}", f"s_lshl_b32 {sr(sA)}, {sr(sA)}, 5",
                f"s_add_u32 {sr(sFl)}, {sr(sFl)}, {sr(sA)}", f"s_add_u32 {sr(sFl)}, {sr(sFl)}, {WS_FLG}",
                f"v_mov_b32 {vr(vT0)}, {sr(sN)}", f"v_mov_b32 {vr(vT1)}, {sr(sN+1)}"]

    if opt.get("wf") == -3:
        a([f"s_lshl_b32 {sr(sA)}, s2, 14", f"s_add_u32 {sr(sA)}, {sr(sA)}, {sr(sWld)}",
           f"v_lshl_add_u32 {vr(TM+3)}, {vr(vL)}, 6, {sr(sA)}",
           ("vm", "WP", f"global_load_dword {vr(TM+3)}, {vr(TM+3)}, s[80:81]")])
    a(qgroup(0, True))
    if opt.get("cpf", 1):
        a("s_getpc_b64 s[88:89]")
        a("L_pc:")
        a(f"s_lshr_b32 {sr(sA)}, s2, 3")
        a(f"s_lshl_b32 {sr(sA)}, {sr(sA)}, 2")
        a(f"s_add_u32 {sr(sA)}, {sr(sA)}, {sr(sW)}")
        a(f"s_lshl_b32 {sr(sA)}, {sr(sA)}, 9")
        a(f"v_lshl_add_u32 v8, v12, 7, {sr(sA)}")
        a("v_min_u32 v8, L_codeend-L_pc-4, v8")
        a(("vm", "CP", f"global_load_dword {vr(TM)}, v8, s[88:89]"))
    a(f"s_lshl_b32 {sr(sA)}, {sr(sB)}, 5")
    a(f"s_add_u32 {sr(sA)}, {sr(sA)}, {sr(sH)}")
    a(f"s_lshl_b32 {sr(sA)}, {sr(sA)}, 18")
    a(f"s_add_u32 {sr(S_K)}, s74, {sr(sA)}")
    a(f"s_addc_u32 {sr(S_K+1)}, s75, 0")
    a(f"s_mov_b32 {sr(S_K+2)}, 0x40000")
    a(f"s_mov_b32 {sr(S_K+3)}, 0x20000")
    a(f"s_add_u32 {sr(S_V)}, s76, {sr(sA)}")
    a(f"s_addc_u32 {sr(S_V+1)}, s77, 0")
    a(f"s_mov_b32 {sr(S_V+2)}, 0x40000")
    a(f"s_mov_b32 {sr(S_V+3)}, 0x20000")
    if opt.get("kvt", 1):
        a("v_mov_b32 v8, 0")
        a(("vm", "CP", f"buffer_load_dword {vr(TM+1)}, v8, {sr(S_K,4)}, 0 offen nt"))
        a(("vm", "CP", f"buffer_load_dword {vr(TM+2)}, v8, {sr(S_V,4)}, 0 offen nt"))
    if opt.get("st", 1):
        a(f"s_lshl_b32 {sr(sA)}, {sr(sW)}, 20")
        a(f"v_mov_b32 v8, {sr(sA)}")
        a(("vm", "CP", f"buffer_load_dword {vr(TM+6)}, v8, {sr(S_WQ,4)}, 0 offen"))
        a(("vm", "CP", f"global_load_dword {vr(TM+7)}, v8, s[80:81]"))
    a(f"s_mov_b32 {sr(S_WS)}, s86")
    a(f"s_mov_b32 {sr(S_WS+1)}, s87")
    a(f"s_mov_b32 {sr(S_WS+2)}, {WS_SIZE}")
    a(f"s_mov_b32 {sr(S_WS+3)}, 0x20000")
    a(f"s_mov_b32 {sr(S_DBG)}, s84")
    a(f"s_mov_b32 {sr(S_DBG+1)}, s85")
    a(f"s_mov_b32 {sr(S_DBG+2)}, 256")
    a(f"s_mov_b32 {sr(S_DBG+3)}, 0x20000")
    a(mknonce())
    a(f"s_mov_b32 {sr(S_OUT)}, s82")
    a(f"s_mov_b32 {sr(S_OUT+1)}, s83")
    a(f"s_mov_b32 {sr(S_OUT+2)}, {1536*1024}")
    a(f"s_mov_b32 {sr(S_OUT+3)}, 0x20000")
    a(f"v_add_u32 {vr(vDmaKV)}, {sr(sWld)}, {vr(vDmaKV)}")
    a(f"s_mul_i32 {sr(sKl)}, {sr(sW)}, {4*PS}")
    nat = opt.get("nat", 0)
    a(f"v_lshlrev_b32 v11, {3 if nat else 4}, v15")
    a(f"v_lshl_add_u32 v11, v13, 6, v11")
    a(f"v_mul_u32_u24 v9, {2*WPS}, v12")
    a(f"v_add_u32 v11, v9, v11")
    for r in range(3):
        a(f"v_add_u32 {vr(vW[r])}, {QB[r]}, v11")
    a(f"v_lshlrev_b32 v9, 3, v15")
    a(f"v_lshl_add_u32 v9, v13, 6, v9")
    a(f"v_lshl_add_u32 v11, v10, 10, v9")
    a(f"v_and_b32 v8, 1, v12")
    a(f"v_lshl_add_u32 v11, v8, 8, v11")
    a(f"v_lshl_add_u32 {vr(vBE)}, v8, 5, v11")
    a(f"v_xor_b32 {vr(vBO)}, 32, {vr(vBE)}")
    a(f"v_lshlrev_b32 v8, 5, v8")
    a(f"v_xor_b32 {vr(vDmaX)}, v8, {vr(vDmaX)}")
    a(f"v_mul_u32_u24 v11, {PS}, v12")
    a(f"v_add_u32 v11, v11, v9")
    a(f"v_add_u32 {vr(vV[0])}, {KSZ}, v11")
    a(f"v_add_u32 {vr(vV[1])}, {KSZ + 2*SLOT}, v11")
    a(f"v_mul_u32_u24 v11, {PS}, v13")
    a(f"v_lshl_add_u32 v11, v15, 6, v11")
    a(f"v_lshl_add_u32 {vr(vK[0])}, v12, 4, v11")
    a(f"v_add_u32 {vr(vK[1])}, {2*SLOT}, {vr(vK[0])}")
    a(f"v_bfe_u32 v11, {vr(vL)}, 3, 1")
    a(f"v_mul_u32_u24 v11, {PS}, v11")
    a(f"v_and_b32 v9, 7, {vr(vL)}")
    a(f"v_lshl_add_u32 v11, v9, 6, v11")
    a(f"v_lshl_add_u32 v11, v12, 4, v11")
    a(f"v_add_u32 v11, {sr(sXld)}, v11")
    for r in range(3):
        a(f"v_add_u32 {vr(vX[r])}, {QB[r] + WQSZ}, v11")
    a(f"v_lshlrev_b32 {vr(vL16)}, 4, {vr(vL)}")
    a(f"s_bfe_u32 {sr(sA)}, s2, 0x20001")
    a(f"s_lshl_b32 {sr(sA)}, {sr(sA)}, 2")
    a(f"s_bfe_u32 {sr(sBt)}, s2, 0x20003")
    a(f"s_add_u32 {sr(sMT)}, {sr(sA)}, {sr(sBt)}")
    a(f"s_lshr_b32 {sr(sNT)}, s2, 5")
    a(f"s_and_b32 {sr(sKH)}, s2, 1")
    a(f"s_mul_i32 {sr(sC)}, {sr(sNT)}, {opt.get('rn', 1)}")
    a(f"s_mul_i32 {sr(sBt)}, {sr(sBt)}, {opt.get('rm', 4)}")
    a(f"s_add_u32 {sr(sOff)}, {sr(sC)}, {sr(sBt)}")
    a(f"s_and_b32 {sr(sOff)}, {sr(sOff)}, 15")
    a(f"s_lshl_b32 {sr(sOffW)}, {sr(sOff)}, 15")
    a(f"s_lshl_b32 {sr(sOff)}, {sr(sOff)}, 10")
    a(f"s_lshl_b32 {sr(sA)}, {sr(sNT)}, 7")
    a(f"s_sub_u32 {sr(S_WO+2)}, 0x80000, {sr(sA)}")
    a(f"s_lshl_b32 {sr(sBt)}, {sr(sW)}, 19")
    a(f"s_add_u32 {sr(sA)}, {sr(sA)}, {sr(sBt)}")
    a(f"s_lshl_b32 {sr(sBt)}, {sr(sKH)}, 21")
    a(f"s_add_u32 {sr(sA)}, {sr(sA)}, {sr(sBt)}")
    a(f"s_add_u32 {sr(S_WO)}, s80, {sr(sA)}")
    a(f"s_addc_u32 {sr(S_WO+1)}, s81, 0")
    a(f"s_mov_b32 {sr(S_WO+3)}, 0x20000")
    a(f"s_mul_i32 {sr(sLl)}, {sr(sW)}, 15360")
    a(f"s_add_u32 {sr(sLl)}, {sr(sLl)}, {QEX}")
    a(f"s_lshl_b32 {sr(sLb)}, {sr(sW)}, 12")
    a(f"s_mul_i32 {sr(sOwn)}, s2, {FST}")
    a(f"s_add_u32 {sr(sOwn)}, {sr(sOwn)}, {WS_FLG}")
    a(f"s_mov_b32 {sr(sMask)}, 0x40004000")
    a(f"v_mov_b32 v11, 0x3f803f80")
    if opt.get("sp1", 1):
        if opt.get("sp1", 1) == 2:
            a(f"v_and_b32 v15, 15, {vr(vL)}")
        a("v_cmp_eq_u32 vcc, 0, v15")
        a("s_nop 1")
        a("v_cndmask_b32 v11, 0, v11, vcc")
    a(f"s_mov_b32 {sr(sC)}, {hex(f32bits(SCALE))}")
    a(f"s_mov_b32 {sr(sBt)}, {sr(sC)}")
    for r in range(4):
        a(f"v_accvgpr_write_b32 {ar(ONES+r)}, v11")
    K, V = True, False
    wq_touch = [f"s_lshr_b32 {sr(sA)}, s2, 1", f"s_lshl_b32 {sr(sA)}, {sr(sA)}, 14", f"s_add_u32 {sr(sA)}, {sr(sA)}, {sr(sWld)}",
                f"s_lshl_b32 {sr(sD)}, {sr(sKH)}, 21", f"s_add_u32 {sr(sA)}, {sr(sA)}, {sr(sD)}",
                f"v_lshl_add_u32 {vr(TM+3)}, {vr(vL)}, 6, {sr(sA)}",
                ("vm", "WP", f"global_load_dword {vr(TM+3)}, {vr(TM+3)}, s[80:81]")]
    if opt.get("fol", 0):
        wq_touch = [f"s_bitcmp1_b32 {sr(sRot)}, 1", "s_cbranch_scc1 L_not",
                    f"s_bfe_u32 {sr(sA)}, s2, 0x20001", f"s_lshr_b32 {sr(sD)}, s2, 4", f"s_lshl_b32 {sr(sD)}, {sr(sD)}, 2",
                    f"s_add_u32 {sr(sA)}, {sr(sA)}, {sr(sD)}", f"s_lshl_b32 {sr(sA)}, {sr(sA)}, 2", f"s_add_u32 {sr(sA)}, {sr(sA)}, {sr(sW)}",
                    f"s_lshl_b32 {sr(sA)}, {sr(sA)}, 13", f"s_lshl_b32 {sr(sD)}, {sr(sKH)}, 21", f"s_add_u32 {sr(sA)}, {sr(sA)}, {sr(sD)}",
                    f"v_lshl_add_u32 {vr(TM+3)}, {vr(vL)}, 7, {sr(sA)}",
                    f"global_load_dword {vr(TM+3)}, {vr(TM+3)}, s[80:81]", "L_not:"]
    def tlbtouch(r):
        return [f"s_mul_i32 {sr(sA)}, {sr(sB)}, 12", f"s_mul_i32 {sr(sD)}, {sr(sMT)}, 6",
                f"v_min_u32 {vr(r)}, 11, {vr(vL)}", f"v_add_u32 {vr(r)}, {sr(sA)}, {vr(r)}",
                f"v_mov_b32 {vr(r+1)}, {sr(sD)}", f"v_cmp_lt_u32 vcc, 31, {vr(vL)}", f"s_mov_b32 {sr(sA)}, {TS}", "s_nop 0",
                f"v_cndmask_b32 {vr(r)}, {vr(r)}, {vr(r+1)}, vcc", f"v_mul_lo_u32 {vr(r)}, {vr(r)}, {sr(sA)}",
                f"s_mov_b32 {sr(sA)}, {131072+128}", f"v_mov_b32 {vr(r+1)}, 0",
                ("vm", "TL", f"buffer_load_dword {vr(vTa)}, {vr(r)}, {sr(S_WS,4)}, {sr(sA)} offen"),
                ("vm", "TL", f"buffer_load_dword {vr(vTa)}, {vr(r+1)}, {sr(S_OUT,4)}, 0 offen")] + (
                [f"s_mul_i32 {sr(sA)}, s2, {PSTR}", f"s_add_u32 {sr(sA)}, {sr(sA)}, {WS_PART + 12288 + 128}",
                 ("vm", "TL", f"buffer_load_dword {vr(vTa)}, {vr(r+1)}, {sr(S_WS,4)}, {sr(sA)} offen")] if opt.get("pt", 1) else []) + [
                ("vm", "TL", f"buffer_load_dword {vr(vTa)}, {vr(r+1)}, {sr(S_WS,4)}, {sr(sOwn)} offen offset:896")] + (
                [f"s_lshl_b32 {sr(sA)}, {sr(sW)}, 7", f"s_add_u32 {sr(sA)}, {sr(sA)}, {sr(sOwn)}", f"v_mov_b32 {vr(r)}, {sr(sA)}",
                 ("vm", "TL", f"buffer_load_dword {vr(vTa)}, {vr(r)}, {sr(S_WS,4)}, 0 offen sc1"),
                 f"s_cmp_eq_u32 {sr(sW)}, 0", f"s_cselect_b32 {sr(sA)}, {sr(sOwn)}, {WS_SIZE}", f"v_mov_b32 {vr(r)}, {sr(sA)}",
                 ("vm", "TL", f"buffer_load_dword {vr(vTa)}, {vr(r)}, {sr(S_WS,4)}, 0 offen offset:{PFO} sc1")] if opt.get("fw", 0) else []) + [
                ("vm", "TL", f"buffer_load_dword {vr(vTa)}, {vr(r+1)}, {sr(S_WO,4)}, 0 offen")]

    if opt.get("tq", -1) == -2:
        a(tlbtouch(vT0))
    if opt.get("wf") == -2:
        a(wq_touch)
    a(qgroup(1, True))
    if opt.get("wf") == -1:
        a(wq_touch)

    def xf(r, qt, ks):
        return 88 * r + (qt * 2 + ks) * 4

    def wf(r, t, ks):
        return 88 * r + 24 + (t * 2 + ks) * 4

    def qreads(s):
        r = s & 1
        b = s % 3
        out = []
        for ks in range(2):
            for qt in range(3):
                out.append(("ds", f"F{s}", f"ds_read_b128 {ar(xf(r,qt,ks),4)}, {vr(vX[b])} offset:{qt*2*PS + ks*512}"))
            for t in range(8):
                for i in range(2):
                    out.append(("ds", f"F{s}", f"ds_read_b64_tr_b16 {ar(wf(r,t,ks)+2*i, 2)}, {vr(vW[b])} offset:{(8*ks+i)*WPS + (t>>1)*256 + (t&1)*(32 if nat else 8)}"))
        return out

    def qacc(qt, t):
        return OA + (qt * 8 + t) * 4

    def qmfmas(s):
        r = s & 1
        out = []
        if s == 7:
            order = [(ks, t, qt) for qt in range(3) for t in range(8) for ks in range(2)]
        else:
            order = [(ks, t, qt) for t in range(8) for qt in range(3) for ks in range(2)] if opt.get("qch", 1) else \
                    [(ks, t, qt) for ks in range(2) for t in range(8) for qt in range(3)]
        for ks, t, qt in order:
            acc = vr(qacc(qt, t), 4)
            c = "0" if (s == 0 and ks == 0) else acc
            out.append(f"{MF} {acc}, {ar(wf(r,t,ks),4)}, {ar(xf(r,qt,ks),4)}, {c}")
        return out

    def fin(qt):
        acc = qacc(qt, 0)
        out = []
        for e in range(16):
            if opt.get("pkm", 1):
                out.append(f"v_pk_mul_f32 {vr(acc+2*e,2)}, {vr(acc+2*e,2)}, {sr(sBt,2)}")
            else:
                out += [f"v_mul_f32 {vr(acc+2*e+h)}, {sr(sC)}, {vr(acc+2*e+h)}" for h in range(2)]
            if e >= 1:
                out.append(f"v_cvt_pk_bf16_f32 {vr(QF+qt*16+e-1)}, {vr(acc+2*e-2)}, {vr(acc+2*e-1)}")
        out.append(f"v_cvt_pk_bf16_f32 {vr(QF+qt*16+15)}, {vr(acc+30)}, {vr(acc+31)}")
        if nat:
            prs = [(QF + qt * 16 + 4 * ks + h, QF + qt * 16 + 4 * ks + 2 + h) for ks in range(4) for h in range(2)]
            out += [f"v_permlane32_swap_b32 {vr(x)}, {vr(y)}" for x, y in prs]
            out += [f"v_permlane16_swap_b32 {vr(x)}, {vr(y)}" for x, y in prs]
        return out

    def kread(g, n):
        sl = g % 3
        kt, ks = n // 4, n % 4
        return ("ds", f"k{g}_{n}", f"ds_read_b128 {ar(KF+4*n,4)}, {vr(vK[sl>>1])} offset:{(sl&1)*SLOT + kt*4*PS + ks*256}")

    VF2 = 80

    def vfr(g, m):
        return (VF2 if (m < 8 and g % 2 == 0) else VF) + 4 * m

    def vread(g, m, i):
        sl = g % 3
        dt, blk = m // 2, m % 2
        return ("ds", f"v{g}_{m}", f"ds_read_b64_tr_b16 {ar(vfr(g,m)+2*i,2)}, {vr(vV[sl>>1])} offset:{(sl&1)*SLOT + blk*8*PS + 4*i*PS + (dt>>1)*256 + (dt&1)*32}")

    def qk(j, first=False):
        out = []
        for n in range(16):
            kt, ks = n // 4, n % 4
            d = vr(SB + 16 * j + 4 * kt, 4)
            c = ("0" if first else vr(CI + 4 * j, 4)) if ks == 0 else d
            out.append(f"{MF} {d}, {ar(KF+4*n,4)}, {vr(QF+j*16+ks*4,4)}, {c}")
        return out

    def pv(g, j, first=False, sumfirst=False):
        out = []
        for m in range(16):
            dt, blk = m // 2, m % 2
            d = vr(OA + (j * 8 + dt) * 4, 4)
            out.append(f"{MF} {d}, {ar(vfr(g,m),4)}, {vr(PB+8*j+4*blk,4)}, {'0' if (first and blk == 0) else d}")
        d = ar(LA + 4 * j, 4)
        sm = [f"{MF} {d}, {ar(ONES,4)}, {vr(PB+8*j+4*blk,4)}, {'0' if (first and blk == 0) else d}" for blk in range(2)]
        return sm + out if sumfirst else out + sm

    a(("wait", ["Q0"], None))
    a("s_barrier")
    a(stamp())
    a(qreads(0))
    es = opt.get("es", 20)
    if not es:
        a(qgroup(2, True))
    plans = {
        3: {4: qgroup(7) + kvpieces(K, 0) + kvpieces(V, 0), 5: kvpieces(K, 1), 6: kvpieces(V, 1), 7: kvpieces(K, 2)},
        5: {4: qgroup(7) + kvpieces(K, 0), 5: kvpieces(K, 1), 6: kvpieces(V, 0), 7: kvpieces(V, 1), 8: kvpieces(K, 2)},
        6: {4: qgroup(7) + kvpieces(K, 0), 5: kvpieces(V, 0) + kvpieces(K, 1), 6: kvpieces(V, 1), 7: kvpieces(K, 2)},
    }
    plan = {s: qgroup(s + 3) for s in range(5)}
    plan.update(plans[opt.get("plan", 6)])
    if opt.get("tq", -1) >= 0:
        k_ = opt.get("tq", -1)
        plan[k_] = plan[k_][:10] + [tlbtouch(vT0)] + plan[k_][10:]
    if opt.get("wf", 0) >= 0:
        k_ = opt.get("wf", 0)
        nq = 10 if k_ < 5 else 0
        plan[k_] = plan[k_][:nq] + [wq_touch] + plan[k_][nq:]
    qd = opt.get("qdiag")
    for s in range(8):
        fill = {}
        if s == 0 and es:
            a(("wait", None, ["F0"]))
            spread(fill, qgroup(2), 0, es)
            fill.setdefault(es, []).extend([("wait", ["Q1"], None), "s_barrier"])
            if qd:
                fill[es] += ["s_memtime s[88:89]", "s_waitcnt lgkmcnt(0)", f"v_writelane_b32 {vr(vDg)}, s88, 0"]
            spread(fill, qreads(1), es + 1, 46)
            spread(fill, plan[0], es + 1, 48)
            a.spine(qmfmas(0), fill)
            continue
        if qd:
            a("s_memtime s[100:101]")
        a(("wait", [f"Q{s+1}"] if s < 7 else ["K0"], "all" if qd else [f"F{s}"]))
        a("s_barrier")
        if qd:
            a([f"v_writelane_b32 {vr(vDg)}, s100, {s}", f"v_writelane_b32 {vr(vDg)}, s88, {16+s}", "s_memtime s[88:89]"])
        if s < 7:
            spread(fill, qreads(s + 1), 0, 44)
        spread(fill, plan[s], 0, 48)
        if s == 7:
            spread(fill, [kread(0, n) for n in range(16)], 0, 20)
            lag = opt.get("lag", 4)
            carry = []
            for k in range(24):
                acc = OA + 4 * k
                it = [f"v_mul_f32 {vr(acc+r)}, {sr(sC)}, {vr(acc+r)}" for r in range(4)]
                it += [f"v_cvt_pk_bf16_f32 {vr(QF+2*k+h)}, {vr(acc+2*h)}, {vr(acc+2*h+1)}" for h in range(2)]
                g = 2 * k + 1 + lag
                parts = [it[:3], it[3:]]
                if nat and k >= 2 and k % 2 == 0:
                    b_ = QF + 2 * (k - 2)
                    parts[0] = parts[0] + [f"v_permlane32_swap_b32 {vr(b_+h)}, {vr(b_+2+h)}" for h in range(2)]
                    parts[1] = parts[1] + [f"v_permlane16_swap_b32 {vr(b_+h)}, {vr(b_+2+h)}" for h in range(2)]
                for h in range(2):
                    if g + h < 48:
                        fill.setdefault(g + h, []).extend(parts[h])
                    else:
                        carry += parts[h]
            if nat:
                b_ = QF + 44
                carry += ["s_nop 1"] + [f"v_permlane32_swap_b32 {vr(b_+h)}, {vr(b_+2+h)}" for h in range(2)] + ["s_nop 0"] + \
                         [f"v_permlane16_swap_b32 {vr(b_+h)}, {vr(b_+2+h)}" for h in range(2)]
        a.spine(qmfmas(s), fill)
    a(stamp())

    def rowmax(j):
        s_ = SB + 16 * j
        m, m2, t = TM, TM + 1, TM + 2
        out = [f"v_max3_f32 {vr(m)}, {vr(s_)}, {vr(s_+1)}, {vr(s_+2)}", f"v_max3_f32 {vr(m2)}, {vr(s_+3)}, {vr(s_+4)}, {vr(s_+5)}",
               f"v_max3_f32 {vr(m)}, {vr(m)}, {vr(s_+6)}, {vr(s_+7)}", f"v_max3_f32 {vr(m2)}, {vr(m2)}, {vr(s_+8)}, {vr(s_+9)}",
               f"v_max3_f32 {vr(m)}, {vr(m)}, {vr(s_+10)}, {vr(s_+11)}", f"v_max3_f32 {vr(m2)}, {vr(m2)}, {vr(s_+12)}, {vr(s_+13)}",
               f"v_max3_f32 {vr(m)}, {vr(m)}, {vr(s_+14)}, {vr(s_+15)}", f"v_max_f32 {vr(m)}, {vr(m)}, {vr(m2)}"]
        for op in ("v_permlane32_swap_b32", "v_permlane16_swap_b32"):
            out += [f"v_mov_b32 {vr(t)}, {vr(m)}", "s_nop 1", f"{op} {vr(t)}, {vr(m)}", "s_nop 1", f"v_max_f32 {vr(m)}, {vr(m)}, {vr(t)}"]
        return out

    def softmax_first(j):
        s_, P = SB + 16 * j, PB + 8 * j
        out = rowmax(j) + [f"v_sub_f32 {vr(CI+4*j+r)}, 0xc1000000, {vr(TM)}" for r in range(4)]
        for e in range(16):
            out.append(f"v_add_f32 {vr(s_+e)}, {vr(s_+e)}, {vr(CI+4*j)}")
            if e >= 1:
                out.append(f"v_exp_f32 {vr(s_+e-1)}, {vr(s_+e-1)}")
            if e >= 3 and e % 2 == 1:
                out.append(f"v_cvt_pk_bf16_f32 {vr(P+(e-3)//2)}, {vr(s_+e-3)}, {vr(s_+e-2)}")
        out += [f"v_exp_f32 {vr(s_+15)}, {vr(s_+15)}", "s_nop 0", f"v_cvt_pk_bf16_f32 {vr(P+7)}, {vr(s_+14)}, {vr(s_+15)}"]
        return out

    def softmax_items(j):
        s_, P = SB + 16 * j, PB + 8 * j
        ex = [f"v_exp_f32 {vr(ET+(e&3))}, {vr(s_+e)}" for e in range(16)]
        cv = [f"v_cvt_pk_bf16_f32 {vr(P+k)}, {vr(ET+((2*k)&3))}, {vr(ET+((2*k+1)&3))}" for k in range(8)]
        ors = [f"v_or3_b32 {vr(vMx)}, {vr(P)}, {vr(P+1)}, {vr(P+2)}"]
        ors += [f"v_or3_b32 {vr(vMx)}, {vr(vMx)}, {vr(P+k)}, {vr(P+k+1)}" for k in (3, 5)]
        fin_ = [f"v_bitop3_b32 {vr(vMx)}, {vr(vMx)}, {vr(P+7)}, {sr(sMask)} bitop3:0xa8", f"v_cmp_ne_u32 vcc, 0, {vr(vMx)}"]
        return ex, cv, ors, fin_

    stubs = []

    def chk(i, j):
        stubs.append((i, j))
        return [f"s_cbranch_vccnz L_st{i}_{j}", f"L_bk{i}_{j}:"]

    NRK = 16
    NK = 16
    WREG = [("a", 16 * n) for n in range(7)] + [("a", KF + 16 * n) for n in range(4)] + [("a", VF + 16 * n) for n in range(4)] + [("a", LA)]
    assert len(WREG) == NRK

    def wreg(f, n=4, o=0):
        k, t = f // 4, f % 4
        if k >= NRK:
            k -= NRK
        ty, b = WREG[k]
        return (ar if ty == "a" else vr)(b + 4 * t + o, n)

    LOCS = {f"A{k}": (sLl, k * 4096) for k in range(3)}
    for k, off in enumerate([SLOT, SLOT + KSZ, 2 * SLOT, 2 * SLOT + KSZ, 0, KSZ]):
        LOCS[f"B{k}"] = (sLb, off)
    wloc = {}
    locbusy = {}
    dnext = [0]
    rnext = [0]
    free = []

    def D(loc, solo=False):
        n = dnext[0]
        dnext[0] += 1
        assert n < NK
        wloc[n] = loc
        sb, off = LOCS[loc]
        items = []
        for p in range(4):
            pre = []
            if p == 0:
                if loc in locbusy:
                    assert locbusy[loc] < rnext[0], (loc, n)
                    pre.append(("wait", None, [f"t{locbusy[loc]}"]))
                pre += [f"s_add_u32 m0, {sr(sb)}, {off}", f"s_mov_b32 {sr(sD)}, {sr(sOffW)}"]
            elif solo:
                pre += [f"s_add_u32 m0, {sr(sb)}, {off}", "s_nop 0"]
            post = [f"s_add_u32 {sr(sD)}, {sr(sD)}, 7168"] if p < 3 else \
                   [f"s_add_u32 {sr(sOffW)}, {sr(sOffW)}, 32768", f"s_and_b32 {sr(sOffW)}, {sr(sOffW)}, 0x7ffff"]
            items.append(pre + [("vm", f"W{n}", f"buffer_load_dwordx4 {vr(vDmaX)}, {sr(S_WO,4)}, {sr(sD)} offen offset:{p*1024}{' nt' if n < opt.get('ntw', 0) else ''} lds")] + post)
        locbusy[loc] = n
        return items

    def Rd():
        n = rnext[0]
        rnext[0] += 1
        sb, off = LOCS[wloc[n]]
        free.append(wloc[n])
        items = [[f"s_add_u32 {sr(sA)}, {sr(sb)}, {off}", f"v_add_u32 {vr(vTa)}, {sr(sA)}, {vr(vBE)}",
                  f"v_add_u32 {vr(vTb)}, {sr(sA)}, {vr(vBO)}", ("wait", [f"W{n}"], None)]]
        for t in range(4):
            for i2 in range(2):
                items.append(("ds", f"t{n}", f"ds_read_b64_tr_b16 {wreg(4*n+t, 2, 2*i2)}, {vr(vTb if t & 1 else vTa)} offset:{2*i2*1024 + (t>>1)*512}"))
        return items

    def ops(spec):
        out = []
        for ch in spec:
            out += D(free.pop(0)) if ch == "D" else Rd()
        return out

    def mix(main, extra, start=0):
        out = []
        n, m = len(main) - start, len(extra)
        k = 0
        for i, x in enumerate(main):
            out.append(x)
            if i >= start:
                while k < m and k * n < (i - start + 1) * m:
                    out.append(extra[k]); k += 1
        out += extra[k:]
        return out

    G = 34
    itd = opt.get("itdiag")
    fills = {(i, j): {g: [] for g in range(G)} for i in range(17) for j in range(3)}

    def F(i, g):
        i += g // (3 * G)
        g %= 3 * G
        return fills[(i, g // G)][g % G]

    def cost(lst):
        c = 0
        for x in lst:
            if isinstance(x, list):
                c += cost(x)
            elif isinstance(x, str):
                c += 0 if x.endswith(":") else (8 if x.startswith("v_exp") else 4)
            elif x[0] in ("vm", "ds"):
                c += 4
        return c

    def barrier(i):
        need = [f"V{i}"] + ([f"K{i+1}"] if (i < 15 and not (opt.get("kbar") and i > 0)) else [])
        if opt.get("itrt"):
            return [("wait", need, None), "s_barrier", f"v_writelane_b32 {vr(vDg)}, s100, {i}", f"v_writelane_b32 {vr(vDg)}, s88, {20+i}",
                    "s_memtime s[100:101]", "s_memrealtime s[88:89]"]
        if itd:
            return ["s_memtime s[100:101]", ("wait", need, "all"), "s_barrier", f"v_writelane_b32 {vr(vDg)}, s100, {i}",
                    f"v_writelane_b32 {vr(vDg)}, s88, {16+i}", "s_memtime s[88:89]"]
        return [("wait", need, None), "s_barrier"]

    for i in range(1, 16):
        for j in range(3):
            if (i, j) == (15, 2):
                continue
            f = fills[(i, j)]
            ex, cv, ors, fin_ = softmax_items(j)
            for e in range(16):
                f[2 * e].append(ex[e])
                if e & 1:
                    f[2 * e + 1].append(cv[e // 2])
            for k, g in enumerate((13, 21, 29)):
                f[g].append(ors[k])
            f[32] += fin_
            if (i, j) == (15, 1):
                f[33] += chk(i, j)
            else:
                F(i, G * (j + 1) + 1).extend(chk(i, j))
    bg = opt.get("bg", 2)
    dpos = [11, 23, G + 3, G + 15, G + 27, 2 * G + 9, 2 * G + 19, 2 * G + 29]
    for i in range(16):
        dm = (kvpieces(V, i + 2) if i + 2 < 16 else []) + (kvpieces(K, i + 3) if i + 3 < 16 else [])
        for n, it in enumerate(dm):
            g = dpos[n]
            if i == 0:
                g = [G + 3, G + 11, G + 19, G + 27, 2 * G + 3, 2 * G + 11, 2 * G + 19, 2 * G + 29][n]
            F(i, g - 1).extend(it[:2] if n % 4 == 0 else it[:1])
            F(i, g).insert(0, it[2])
            if opt.get("cap", 4) and i >= opt.get("capi", 8):
                F(i, g).insert(0, ("capkv", opt.get("cap", 4) - 1))
            if opt.get("capf") and opt.get("capf0", 6) <= i < opt.get("capf1", 10):
                F(i, g).insert(0, ("condcap", opt["capf"] - 1, f"s_bitcmp1_b32 {sr(sRot)}, 1", f"L_cc{i}_{n}"))
            elif opt.get("cap2") and i >= opt.get("cap2i", 0):
                F(i, g).insert(0, ("capkv", opt["cap2"] - 1))
    bud = opt.get("bud", 8)
    for i in range(16):
        if i > 0:
            F(i, bg).extend(barrier(i))
        reqs = [((bg + 1 if m < 8 else 16 + m) if i > 0 else G, G + 16 + (m & ~3) - (8 if i > 0 else 4), vread(i, m, h)) for m in range(16) for h in range(2)]
        if i < 15:
            reqs += [(G + n, 2 * G + (n & ~3) - 8, kread(i + 1, n)) for n in range(16)]
        cur = 0
        firstk = None
        for lo, hi, it in reqs:
            g = max(lo, cur)
            while g < hi and cost(F(i, g)) + 4 > (bud if i > 0 else 8):
                g += 1
            lst = F(i, g)
            if lst and isinstance(lst[0], tuple) and lst[0][0] in ("ds",):
                k = 0
                while k < len(lst) and isinstance(lst[k], tuple) and lst[k][0] == "ds":
                    k += 1
                lst.insert(k, it)
            else:
                lst.insert(0, it)
            cur = g
            if firstk is None and it[1].startswith("k"):
                firstk = g
        if opt.get("kbar") and 0 < i < 15:
            F(i, firstk - 1).extend([("wait", [f"K{i+1}"], None), "s_barrier"])
        for m in ((0, 8, 12) if i > 0 else (0, 4, 8, 12)):
            F(i, G + 16 + m - 1).append(("wait", None, [f"v{i}_{m + (7 if (i > 0 and m == 0) else 3)}"]))
        if i < 15:
            for n in range(0, 16, 4):
                F(i, 2 * G + n - 1).append(("wait", None, [f"k{i+1}_{n+3}"]))
    if opt.get("lt"):
        F(12, 2 * G + 11).extend([f"s_lshr_b32 {sr(sA)}, s2, 3", f"s_lshl_b32 {sr(sA)}, {sr(sA)}, 16", f"s_lshl_b32 {sr(sD)}, {sr(sW)}, 12",
                                  f"s_add_u32 {sr(sA)}, {sr(sA)}, {sr(sD)}", f"s_lshl_b32 {sr(sD)}, {sr(sKH)}, 21", f"s_add_u32 {sr(sA)}, {sr(sA)}, {sr(sD)}",
                                  f"v_lshl_add_u32 {vr(TM+6)}, {vr(vL)}, 6, {sr(sA)}"])
        g0, st = opt.get("lt0", G + 27), opt.get("lts", 24)
        for k in range(4):
            F(13, g0 + k * st).extend([("vm", "WP", f"global_load_dword {vr(TM+7)}, {vr(TM+6)}, s[80:81]{' nt' if opt['lt'] == 1 else ''}"),
                                       f"v_add_u32 {vr(TM+6)}, 0x4000, {vr(TM+6)}"])
    if opt.get("wtr"):
        npart, wt0 = opt["wtr"], opt.get("wt0", 1)
        sh = {2: 2, 4: 3, 8: 4}[npart]
        F(wt0, 2 * G + 11).extend([f"s_lshr_b32 {sr(sA)}, s2, 1", f"s_lshl_b32 {sr(sA)}, {sr(sA)}, 14", f"s_lshl_b32 {sr(sD)}, {sr(sW)}, 12",
                                   f"s_add_u32 {sr(sA)}, {sr(sA)}, {sr(sD)}", f"s_lshl_b32 {sr(sD)}, {sr(sKH)}, 21", f"s_add_u32 {sr(sA)}, {sr(sA)}, {sr(sD)}",
                                   f"v_lshrrev_b32 {vr(vTb)}, {sh}, {vr(vL)}", f"v_lshl_add_u32 {vr(vTb)}, {vr(vTb)}, 7, {sr(sA)}"])
        for k in range(npart):
            F(wt0 + k, 2 * G + 15).append(("vm", "WP", f"global_load_dword {vr(TM+7)}, {vr(vTb)}, s[80:81] offset:{k * 4096 // npart}"))
    if opt.get("wpf"):
        F(13, opt["wpf"]).extend([f"s_lshr_b32 {sr(sA)}, s2, 1", f"s_lshl_b32 {sr(sA)}, {sr(sA)}, 14", f"s_lshl_b32 {sr(sD)}, {sr(sW)}, 12",
                                  f"s_add_u32 {sr(sA)}, {sr(sA)}, {sr(sD)}", f"s_lshl_b32 {sr(sD)}, {sr(sKH)}, 21", f"s_add_u32 {sr(sA)}, {sr(sA)}, {sr(sD)}",
                                  f"v_lshl_add_u32 {vr(TM+6)}, {vr(vL)}, 6, {sr(sA)}",
                                  ("vm", "WP", f"global_load_dword {vr(TM+7)}, {vr(TM+6)}, s[80:81]")])
    if opt.get("tq", -1) == -1:
        F(opt.get("ti", 1), 2 * G + 13).extend(tlbtouch(vT0))
    F(6, 2 * G + 13).extend([f"v_mov_b32 {vr(TM+6)}, 0", ("vm", "NC", f"buffer_load_dwordx2 {vr(TM+4,2)}, {vr(TM+6)}, {sr(S_DBG,4)}, 0 offen")])
    F(10, 2 * G + 13).extend([("wait", ["NC"], None), f"v_readfirstlane_b32 {sr(sN)}, {vr(TM+4)}", f"v_readfirstlane_b32 {sr(sN+1)}, {vr(TM+5)}"])
    F(10, 2 * G + 15).extend([f"s_cmp_eq_u32 {sr(sN)}, 0", "s_cbranch_scc1 L_ncslow", "L_ncok:"])
    F(8, 2 * G + 13).extend([f"s_lshl_b32 {sr(sBt)}, {sr(sW)}, 14", f"s_mul_i32 {sr(sA)}, {sr(sMT)}, {6*TS}", f"s_add_u32 {sr(sA)}, {sr(sA)}, {sr(sBt)}",
                             f"s_lshl_b32 {sr(sBt)}, {sr(sKH)}, 16", f"s_add_u32 {sr(sA)}, {sr(sA)}, {sr(sBt)}",
                             f"s_add_u32 {sr(S_X)}, {sr(S_WS)}, {sr(sA)}", f"s_addc_u32 {sr(S_X+1)}, {sr(S_WS+1)}, 0",
                             f"s_mov_b32 {sr(S_X+2)}, {5*TS+16384}"])
    F(9, 2 * G + 13).extend([f"s_lshl_b32 {sr(sC)}, {sr(sB)}, 2", f"s_add_u32 {sr(sC)}, {sr(sC)}, {sr(sW)}",
                             f"s_mul_i32 {sr(sC)}, {sr(sC)}, {3*TS}", f"s_lshl_b32 {sr(sBt)}, {sr(sH)}, 12",
                             f"s_add_u32 {sr(sC)}, {sr(sC)}, {sr(sBt)}"])

    def norm(q):
        r = TM + 2 * q + 2
        out = [f"v_accvgpr_read_b32 {vr(r)}, {ar(LA+4*q)}"]
        if opt.get("sp1", 1) == 2:
            for op in ("v_permlane32_swap_b32", "v_permlane16_swap_b32"):
                out += [f"v_mov_b32 {vr(r+1)}, {vr(r)}", "s_nop 1", f"{op} {vr(r+1)}, {vr(r)}", "s_nop 1", f"v_add_f32 {vr(r)}, {vr(r)}, {vr(r+1)}"]
        out += [f"v_rcp_f32 {vr(r)}, {vr(r)}", "s_nop 0"]
        for jj in range(4):
            ob = OA + q * 32 + jj * 8
            out += [f"v_mul_f32 {vr(ob+e)}, {vr(ob+e)}, {vr(r)}" for e in range(8)] if opt.get("nmul") else \
                   [f"v_pk_mul_f32 {vr(ob+e,2)}, {vr(ob+e,2)}, {vr(r,2)} op_sel_hi:[1,0]" for e in range(0, 8, 2)]
            out += [f"v_cvt_pk_bf16_f32 {vr(ob+e)}, {vr(ob+2*e)}, {vr(ob+2*e+1)}" for e in range(4)]
            out.append(("vm", "ST", f"buffer_store_dwordx4 {vr(ob,4)}, {vr(vL16)}, {sr(S_WS,4)}, {sr(sC)} offen offset:{jj*1024} sc1"))
        out.append(f"s_add_u32 {sr(sC)}, {sr(sC)}, {TS}")
        return out

    f = {}
    spread(f, carry, 0, 6)
    if 8 in plan:
        spread(f, plan[8], 1, 16)
    a(("wait", None, ["k0_15"]))
    a.spine(qk(0, True), f)
    if qd:
        a(["s_memtime s[100:101]", "s_waitcnt lgkmcnt(0)", f"v_writelane_b32 {vr(vDg)}, s100, 8", f"v_writelane_b32 {vr(vDg)}, s88, 24",
           f"v_writelane_b32 {vr(vDg)}, s100, 25", f"s_lshl_b32 {sr(sA)}, s2, 2", f"s_add_u32 {sr(sA)}, {sr(sA)}, {sr(sW)}",
           f"s_lshl_b32 {sr(sA)}, {sr(sA)}, 8", f"s_add_u32 {sr(sA)}, {sr(sA)}, {WS_DIAG + (2<<20)}",
           f"v_lshlrev_b32 {vr(vT0)}, 2, {vr(vL)}", f"buffer_store_dword {vr(vDg)}, {vr(vT0)}, {sr(S_WS,4)}, {sr(sA)} offen untracked"])
    a(stamp())
    wplans = {0: {(13, 2): "D", (14, 0): "D", (14, 2): "D", (15, 0): "D", (15, 1): "DD"},
              1: {(13, 2): "D", (14, 0): "D", (14, 1): "D", (14, 2): "D", (15, 0): "DR", (15, 1): "DDR"},
              2: {(13, 2): "D", (14, 0): "D", (14, 1): "D", (14, 2): "DD", (15, 0): "RRD", (15, 1): "DDDR"},
              3: {(13, 2): "DD", (14, 0): "D", (14, 1): "DD", (14, 2): "DRR", (15, 0): "DDRR", (15, 1): "DDDDR"},
              4: {(13, 2): "DDD", (14, 1): "DDD", (14, 2): "RRRD", (15, 0): "DDRR", (15, 1): "DDDD"}}
    wplans[9] = {(15, 0): "DD", (15, 1): "DDD"}
    wplans[10] = {(14, 2): "DD", (15, 0): "DD", (15, 1): "DD"}
    wplans[11] = {(14, 1): "D", (14, 2): "DD", (15, 0): "DD", (15, 1): "DDR"}
    wplans[5] = {}
    wplans[6] = {(14, 2): "D", (15, 0): "D", (15, 1): "DD"}
    wpl = wplans.get(opt.get("wp", 1))
    il = opt.get("il", 0)
    ilsched = {}
    if il:
        n_il = opt.get("iln", 8)
        per = opt.get("ilp", 1)
        seq = []
        for k in range(n_il):
            seq.append("D" if k < 3 else "RD")
        for k in range(0, n_il, per):
            ilsched[(il + k // per, 2)] = "".join(seq[k:k + per])
        wplans[7] = {}
        wplans[8] = {(14, 2): "D", (15, 0): "D", (15, 1): "D"}
        wpl = wplans[opt.get("wp", 7)]
    avail = {((il, 2) if il else (13, 2)): ["A0", "A1", "A2"], (14, 1): ["B0", "B1", "B2"], (15, 1): ["B3", "B4"]}
    for i in range(16):
        for j in range(3):
            f = fills[(i, j)]
            jn, jp = (j + 1) % 3, (j + 2) % 3
            if (i, j) == (0, 0):
                sf = softmax_first(0)
                spread(f, sf[:44], 4, 16)
                f[15] += barrier(0)
                a.spine(qk(1, True), {g: v for g, v in f.items() if g < 16})
                a(sf[44:])
                continue
            if (i, j) == (15, 2):
                ex, cv, ors, fin_ = softmax_items(2)
                lin = []
                for e in range(16):
                    lin.append(ex[e])
                    if e >= 2 and e % 2 == 0:
                        lin.append(cv[e // 2 - 1])
                    if e in (7, 11):
                        lin.append(ors[(e - 7) // 4])
                lin += [ors[2], cv[7]] + fin_
                f = {}
                spread(f, lin, 0, 17)
                spread(f, norm(0), 3, 18)
                a.spine(pv(15, 1, sumfirst=True), f)
                continue
            if i == 0:
                ws_ = {g: [x for x in v if isinstance(x, tuple) and x[0] == "wait"] for g, v in f.items()}
                for g in f:
                    f[g] = [x for x in f[g] if not (isinstance(x, tuple) and x[0] == "wait")]
                spread(f, softmax_first(j), 2, 34)
                for g in f:
                    f[g] += ws_[g]
            free.extend(avail.get((i, j), []))
            if (i, j) in ilsched:
                its = []
                for ch in ilsched[(i, j)]:
                    its += D(free.pop(0), True) if ch == "D" else Rd()
                ok_g = [g for g in range(10, 33) if g not in (18, 28)]
                for n_, it in enumerate(its):
                    f[ok_g[(n_ * len(ok_g)) // len(its)]].append(it)
                assert rnext[0] <= 5
            if (i, j) in wpl:
                tail = f[33]; f[33] = []
                spread(f, ops(wpl[(i, j)]), 3, 33)
                assert rnext[0] <= 5
                f[33] += tail
            a.spine(qk(jn, first=(i == 0 and j < 2)) + pv(i - 1 if j == 0 else i, jp, first=(i == 0 or (i == 1 and j == 0))), f)
    a(chk(15, 2))
    a(stamp())
    if itd:
        a(["s_waitcnt lgkmcnt(0)", f"v_writelane_b32 {vr(vDg)}, s88, {36 if opt.get('itrt') else 32}", f"v_writelane_b32 {vr(vDg)}, s100, 16", f"s_lshl_b32 {sr(sA)}, s2, 2", f"s_add_u32 {sr(sA)}, {sr(sA)}, {sr(sW)}",
           f"s_lshl_b32 {sr(sA)}, {sr(sA)}, 8", f"s_add_u32 {sr(sA)}, {sr(sA)}, {WS_DIAG + (2<<20)}",
           f"v_lshlrev_b32 v2, 2, {vr(vL)}", f"buffer_store_dword {vr(vDg)}, v2, {sr(S_WS,4)}, {sr(sA)} offen untracked"])

    def wstep(dlim, rlim=NRK):
        out = []
        if (len(free) < 2 or dnext[0] >= dlim or dnext[0] - rnext[0] >= opt.get("rlag", 9)) and rnext[0] < rlim and rnext[0] < dnext[0]:
            out += Rd()
        if dnext[0] < dlim and free:
            out += D(free.pop(0))
        return out

    def wsteps(n, rlim):
        out = []
        for _ in range(n):
            out += wstep(NK, rlim)
        return out
    f = {}
    e0 = wsteps(opt.get("fd", 0), 11)
    if e0:
        spread(f, e0, 0, 18)
    spread(f, norm(1), 3, 18)
    a.spine(pv(15, 2, sumfirst=True), f)
    a(mix(["s_nop 3"] + norm(2), wsteps(opt.get("fn", 0), 15)))
    a(stamp())
    a(wsteps(opt.get("nack", 3), NRK))
    a(pubprep())
    a(("wait", ["ST"], None))
    a("s_barrier")
    free.append("B5")
    a(publish())
    a(stamp())
    steps = []
    while dnext[0] < NK or rnext[0] < opt.get("rpre", 4):
        steps.append(wstep(NK))
    pp = min(opt.get("pp", 2), len(steps))
    ACCS = [16, 112]
    RO = 64
    VOS = [[160, 161, 162], [163, 164, 165]]
    vPart, vRed, vRd, vOut, vFl = 166, 167, 168, 169, 170
    RB = 176
    PR = 224
    a([f"s_xor_b32 {sr(sBt)}, {sr(sKH)}, 1", f"s_mul_i32 {sr(sBt)}, {sr(sBt)}, {3*TS}", f"s_mul_i32 {sr(sC)}, {sr(sKH)}, {3*TS}",
       f"v_add_u32 {vr(VOS[0][0])}, {sr(sBt)}, {vr(vL16)}", f"v_add_u32 {vr(VOS[1][0])}, {sr(sC)}, {vr(vL16)}"])
    a([f"v_add_u32 {vr(VOS[p][t])}, {t*TS}, {vr(VOS[p][0])}" for p in range(2) for t in (1, 2)])
    a([f"v_add_u32 {vr(vRed)}, {sr(sLl)}, {vr(vL16)}", f"s_lshl_b32 {sr(sC)}, {sr(sW)}, 10", f"s_add_u32 {sr(sC)}, {sr(sC)}, {QEX}",
       f"v_add_u32 {vr(vRd)}, {sr(sC)}, {vr(vL16)}", f"s_mul_i32 {sr(sC)}, {sr(sW)}, 3072", f"v_add_u32 {vr(vPart)}, {sr(sC)}, {vr(vL16)}",
       f"v_and_b32 {vr(vOut)}, 15, {vr(vL)}", f"v_lshlrev_b32 {vr(vOut)}, 10, {vr(vOut)}", f"v_lshrrev_b32 v6, 4, {vr(vL)}",
       f"v_lshl_add_u32 {vr(vOut)}, v6, 3, {vr(vOut)}"])
    if pw4:
        a([f"v_and_b32 v7, 3, {vr(vL)}", f"s_lshl_b32 {sr(sBt)}, {sr(sW)}, 7", f"s_add_u32 {sr(sBt)}, {sr(sBt)}, {sr(sOwn)}",
           f"v_lshl_add_u32 v7, v7, 3, {sr(sBt)}"])
    else:
        a([f"v_and_b32 v7, 15, {vr(vL)}", f"s_cmp_eq_u32 {sr(sW)}, 0", f"s_cselect_b32 {sr(sBt)}, {sr(sOwn)}, {WS_SIZE}",
           f"v_lshl_add_u32 v7, v7, 3, {sr(sBt)}"])
    vP = 172
    a(steps[:len(steps) - pp])
    ld1 = f"buffer_load_dwordx2 {vr(vP,2)}, v7, {sr(S_WS,4)}, 0 offen sc1"
    a(("vm", "PL", ld1))
    a(steps[len(steps) - pp:])
    a(stamp())

    def pollblk(name, tag, ld, slp, allw=False):
        cmp_ = f"v_cmp_ne_u64 vcc, {sr(sN,2)}, {vr(vP,2)}"
        if not allw:
            a(f"s_cmp_lg_u32 {sr(sW)}, 0")
            a(f"s_cbranch_scc1 {name}_ok")
        sv = a.vmdone
        a(("wait", [tag], None))
        a.vmdone = sv
        a(cmp_)
        a(f"s_cbranch_vccz {name}_ok")
        a("s_mov_b32 s13, 0x100000")
        a(f"{name}:")
        a(ld + " untracked")
        a("s_waitcnt vmcnt(0)")
        a(cmp_)
        a(f"s_cbranch_vccz {name}_ok")
        if slp:
            a(f"s_sleep {slp}")
        a("s_sub_u32 s13, s13, 1")
        a(f"s_cbranch_scc0 {name}")
        a(f"{name}_ok:")
        if not allw:
            a("s_barrier")
    pollblk("L_poll2", "PL", ld1, opt.get("slp", 2), pw4)
    a(stamp())
    D_ = 4
    CH = 2
    sOf2, sPw, sPr, sPf = 46, 48, 41, 12

    deep = opt.get("deep", 0)

    def oslot(j):
        if deep and 24 <= j < 28:
            return ACCS[0] + 12 * (j - 24)
        return RO + 12 * (j % D_)

    def oload(j, q):
        b = oslot(j)
        so = sOff if (j % CH == 0) else sOf2
        return [("vm", f"O{j}_{q}", f"buffer_load_dwordx4 {vr(b+4*q,4)}, {vr(VOS[j//16][q])}, {sr(S_X,4)}, {sr(so)} offen sc1")]

    def adv():
        return [f"s_add_u32 {sr(sOff)}, {sr(sOf2)}, 1024", f"s_and_b32 {sr(sOff)}, {sr(sOff)}, 0x3fff",
                f"s_add_u32 {sr(sOf2)}, {sr(sOff)}, 1024", f"s_and_b32 {sr(sOf2)}, {sr(sOf2)}, 0x3fff"]
    a([f"s_add_u32 {sr(sOf2)}, {sr(sOff)}, 1024", f"s_and_b32 {sr(sOf2)}, {sr(sOf2)}, 0x3fff"])
    for j0 in range(0, D_, CH):
        for q in range(3):
            for kk in range(CH):
                a(oload(j0 + kk, q))
        a(adv())
    a([f"s_mul_i32 {sr(sPw)}, s2, {PSTR}", f"s_add_u32 {sr(sPw)}, {sr(sPw)}, {WS_PART}",
       f"s_xor_b32 {sr(sPf)}, s2, 1", f"s_mul_i32 {sr(sPr)}, {sr(sPf)}, {PSTR}", f"s_add_u32 {sr(sPr)}, {sr(sPr)}, {WS_PART}",
       f"s_mul_i32 {sr(sPf)}, {sr(sPf)}, {FST}", f"s_add_u32 {sr(sPf)}, {sr(sPf)}, {WS_FLG}",
       f"s_cmp_eq_u32 {sr(sW)}, 0", f"s_cselect_b32 {sr(sBt)}, {sr(sPf)}, {WS_SIZE}", f"v_mov_b32 {vr(vFl)}, {sr(sBt)}"])

    ld2 = f"buffer_load_dwordx2 {vr(vP,2)}, {vr(vFl)}, {sr(S_WS,4)}, 0 offen offset:{PFO} sc1"

    def redwrite(p):
        return [("ds", f"z{p}", f"ds_write_b128 {vr(vRed)}, {vr(ACCS[p]+4*idx,4)} offset:{idx*1024}") for idx in range(12)]

    def redread(p):
        return [("ds", f"y{p}_{q}", f"ds_read_b128 {vr(RB+(q*4+w)*4,4)}, {vr(vRd)} offset:{w*15360 + q*4096}") for q in range(3) for w in range(4)]

    def redadd(p, q, pk):
        b = RB + q * 16
        out = [("wait", None, [f"y{p}_{q}"])]
        if pk:
            out += [f"v_pk_add_f32 {vr(b+o+e,2)}, {vr(b+o+e,2)}, {vr(b+o+4+e,2)}" for e in (0, 2) for o in (0, 8)]
            out += [f"v_pk_add_f32 {vr(b+e,2)}, {vr(b+e,2)}, {vr(b+8+e,2)}" for e in (0, 2)]
        else:
            out += [f"v_add_f32 {vr(b+o+e)}, {vr(b+o+e)}, {vr(b+o+4+e)}" for e in range(4) for o in (0, 8)]
            out += [f"v_add_f32 {vr(b+e)}, {vr(b+e)}, {vr(b+8+e)}" for e in range(4)]
        return out
    extra = {16: [[]] * 4 + redwrite(0),
             18: [[("wait", None, ["z0"]), "s_barrier"]] + redread(0),
             20: [x for q in range(3) for x in redadd(0, q, False) +
                  [("vm", "S2", f"buffer_store_dwordx4 {vr(RB+q*16,4)}, {vr(vPart)}, {sr(S_WS,4)}, {sr(sPw)} offen offset:{q*1024} sc1")]]}
    ew = opt.get("ew", 2)
    rw1 = redwrite(1)
    if ew:
        extra[30] = [[]] * 8 + rw1[0:4] + [[]] * 2 + rw1[4:8]
        rw1 = rw1[8:]
        rw0 = redwrite(0)
        extra[14] = [[]] * 8 + rw0[0:4] + [[]] * 2 + rw0[4:8]
        if ew == 1:
            extra[16] = [[]] * 3 + [x for w_ in rw0[8:] for x in (w_, [])]
        else:
            extra[16] = [[]] * 3 + rw0[8:] + [[]] * 4 + [extra[18][0]] + [extra[18][1 + 2*k: 3 + 2*k] for k in range(6)]
            extra[18] = extra.pop(20)
    if opt.get("xq"):
        extra = {16: [[]] * 6 + redwrite(0) + [[]] * 6 + extra[18], 18: extra[20]}
    jsig, jpl, jck = opt.get("jsig", 24), opt.get("jpl", 28), opt.get("jck", 32)
    for j0 in range(0, 32, CH):
        p = j0 // 16
        if j0 in (2, 8, 16, 20, 24, 26, 28):
            a(stamp(True))
        if j0 == jsig:
            a(("wait", ["S2"], None))
            a("s_barrier")
            a(w0only("L_c4", 1, [f"buffer_store_dwordx2 {vr(vT0,2)}, {vr(vL16)}, {sr(S_WS,4)}, {sr(sOwn)} offen offset:{PFO} sc1 untracked"]))
        if j0 == jpl:
            a(("vm", "P2", ld2))
        if j0 == jck:
            pollblk("L_poll3", "P2", ld2, 1)
            a([("vm", f"PR{q}", f"buffer_load_dwordx4 {vr(PR+4*q,4)}, {vr(vPart)}, {sr(S_WS,4)}, {sr(sPr)} offen offset:{q*1024} sc1") for q in range(3)])
        if deep and j0 == 20:
            for jb in (24, 26):
                for q in range(3):
                    for kk in range(CH):
                        a(oload(jb + kk, q))
                a(adv())
        nxt = j0 + D_ + (4 if (deep and j0 >= 20) else 0)
        rd = list(extra.get(j0, []))
        for kk in range(CH):
            if rnext[0] < NK:
                rd += Rd()
        assert rnext[0] >= min(NK, j0 + 2 * CH)
        npq = -(-len(rd) // 18)
        for q in range(3):
            a(("wait", [f"O{j0+kk}_{q}" for kk in range(CH)], [f"t{(j0+kk)%16}" for kk in range(CH)]))
            for t in range(4):
                acc = vr(ACCS[p] + (q * 4 + t) * 4, 4)
                for kk in range(CH):
                    j = j0 + kk
                    b = oslot(j)
                    a(f"{MF} {acc}, {wreg(4*(j%16)+t)}, {vr(b+4*q,4)}, {'0' if j % 16 == 0 else acc}")
                    if t < 3:
                        for _ in range(npq):
                            if rd:
                                a(rd.pop(0))
            if nxt < 32:
                for kk in range(CH):
                    a(oload(nxt + kk, q))
        a(adv())
    a(stamp())
    a("s_nop 3")
    a(rw1)
    a(("wait", None, ["z1"]))
    if jck >= 32:
        pollblk("L_poll3", "P2", ld2, 1)
        a([("vm", f"PR{q}", f"buffer_load_dwordx4 {vr(PR+4*q,4)}, {vr(vPart)}, {sr(S_WS,4)}, {sr(sPr)} offen offset:{q*1024} sc1") for q in range(3)])
    else:
        a("s_barrier")
    a(redread(1))
    a([f"s_lshl_b32 {sr(sOff)}, {sr(sMT)}, 1", f"s_add_u32 {sr(sOff)}, {sr(sOff)}, {sr(sKH)}", f"s_mul_i32 {sr(sOff)}, {sr(sOff)}, {48*1024}",
       f"s_lshl_b32 {sr(sA)}, {sr(sNT)}, 7", f"s_add_u32 {sr(sOff)}, {sr(sOff)}, {sr(sA)}",
       f"s_lshl_b32 {sr(sA)}, {sr(sW)}, 5", f"s_add_u32 {sr(sOff)}, {sr(sOff)}, {sr(sA)}"])
    for q in range(3):
        a(redadd(1, q, True))
    for q in range(3):
        b = RB + q * 16
        a(("wait", [f"PR{q}"], None))
        a([f"v_pk_add_f32 {vr(b+e,2)}, {vr(b+e,2)}, {vr(PR+4*q+e,2)}" for e in (0, 2)])
        a(f"v_cvt_pk_bf16_f32 {vr(b)}, {vr(b)}, {vr(b+1)}")
        a(f"v_cvt_pk_bf16_f32 {vr(b+1)}, {vr(b+2)}, {vr(b+3)}")
        a(("vm", "out", f"buffer_store_dwordx2 {vr(b,2)}, {vr(vOut)}, {sr(S_OUT,4)}, {sr(sOff)} offen"))
        if q < 2:
            a(f"s_add_u32 {sr(sOff)}, {sr(sOff)}, 16384")
    if diag:
        a("s_waitcnt vmcnt(0)")
        a(stamp())
        a(f"s_memrealtime {sr(sSt + 2*nstamp[0], 2)}")
        a("s_waitcnt lgkmcnt(0)")
        n = nstamp[0]
        print("nstamps", n, file=sys.stderr)
        if opt.get("probe") is not None:
            pa, pb, mult = opt["probe"] // 100, opt["probe"] % 100, opt.get("mult", 1)
            a(f"s_sub_u32 s3, s{60+2*pb}, s{60+2*pa}")
            a(f"s_mul_i32 s3, s3, {mult}")
            a(f"s_add_u32 s3, s3, s{60+2*n}")
            a("L_spin:")
            a("s_sleep 4")
            a("s_memrealtime s[12:13]")
            a("s_waitcnt lgkmcnt(0)")
            a("s_sub_u32 s12, s12, s3")
            a("s_cmp_lt_i32 s12, 0")
            a("s_cbranch_scc1 L_spin")
            a("s_endpgm")
        if opt.get("hdiag"):
            words = [1, 2, 3, 4, 5, 6, 7, 9, 10, 11, 12, 13, 14, 15]
            a("v_mov_b32 v20, 0")
            a("v_mov_b32 v21, 256")
            a("s_not_b32 s3, s60")
            a("v_writelane_b32 v20, s3, 0")
            for i in range(n):
                a(f"v_writelane_b32 v20, s{60+2*i}, {i+1}")
            for i in range(n + 1):
                a(f"v_writelane_b32 v21, {words[i]*4}, {i}")
            a(f"buffer_atomic_umax v20, v21, {sr(S_DBG,4)}, 0 offen sc1 untracked")
            a("s_endpgm")
        a("v_mov_b32 v20, 0")
        for i in range(2 * n + 4):
            a(f"v_writelane_b32 v20, s{58+i}, {i}")
        a(f"s_lshl_b32 {sr(sA)}, s2, 2")
        a(f"s_add_u32 {sr(sA)}, {sr(sA)}, {sr(sW)}")
        a(f"s_lshl_b32 {sr(sA)}, {sr(sA)}, 8")
        a(f"s_add_u32 {sr(sA)}, {sr(sA)}, {WS_DIAG}")
        a(f"v_lshlrev_b32 v21, 2, {vr(vL)}")
        a(f"buffer_store_dword v20, v21, {sr(S_WS,4)}, {sr(sA)} offen untracked")
    a("L_end:")
    a("s_endpgm")
    a("L_ncslow:")
    a("s_mov_b32 s13, 0x100000")
    a("L_ncs2:")
    a("s_sleep 8")
    a(f"buffer_load_dwordx2 {vr(TM+4,2)}, {vr(TM+6)}, {sr(S_DBG,4)}, 0 offen offset:128 sc1 untracked")
    a("s_waitcnt vmcnt(0)")
    a(f"v_readfirstlane_b32 {sr(sN)}, {vr(TM+4)}")
    a(f"v_readfirstlane_b32 {sr(sN+1)}, {vr(TM+5)}")
    a(f"s_cmp_lg_u32 {sr(sN)}, 0")
    a("s_cbranch_scc1 L_ncok")
    a("s_sub_u32 s13, s13, 1")
    a("s_cbranch_scc0 L_ncs2")
    a("s_branch L_ncok")
    for i, j in stubs:
        a(f"L_st{i}_{j}:")
        a(f"s_call_b64 {sr(sRet,2)}, L_rare{j}")
        a(f"s_branch L_bk{i}_{j}")
    for j in range(3):
        s_, P, m = SB + 16 * j, PB + 8 * j, TM
        a(f"L_rare{j}:")
        a("s_nop 7")
        a(rowmax(j))
        a(f"v_add_f32 {vr(m)}, 0x41000000, {vr(m)}")
        a(f"v_max_f32 {vr(m)}, 0, {vr(m)}")
        for r in range(16):
            a(f"v_sub_f32 {vr(s_+r)}, {vr(s_+r)}, {vr(m)}")
        for r in range(16):
            a(f"v_exp_f32 {vr(s_+r)}, {vr(s_+r)}")
        a(f"v_sub_f32 {vr(vT0)}, 0, {vr(m)}")
        a(f"v_exp_f32 {vr(vT0)}, {vr(vT0)}")
        for r in range(4):
            a(f"v_sub_f32 {vr(CI+4*j+r)}, {vr(CI+4*j+r)}, {vr(m)}")
        for r in range(8):
            a(f"v_cvt_pk_bf16_f32 {vr(P+r)}, {vr(s_+2*r)}, {vr(s_+2*r+1)}")
        for r in range(32):
            a(f"v_mul_f32 {vr(OA+32*j+r)}, {vr(OA+32*j+r)}, {vr(vT0)}")
        for r in range(4):
            a(f"v_accvgpr_read_b32 {vr(vT1)}, {ar(LA+4*j+r)}")
            a(f"v_mul_f32 {vr(vT1)}, {vr(vT1)}, {vr(vT0)}")
            a(f"v_accvgpr_write_b32 {ar(LA+4*j+r)}, {vr(vT1)}")
        a("s_nop 1")
        a(f"s_setpc_b64 {sr(sRet,2)}")
    a("L_codeend:")


def generate(opt):
    k = f"{NAME}_kernel"
    out = f"""; GQA block: q = x@wq, softmax(q k^T / sqrt(128)) v, @wo  -- one fused launch, 256 workgroups (one per (batch, head)).
; @launch grid=(256,1,1) block=(256,1,1) lds={LDS}
.amdgcn_target "amdgcn-amd-amdhsa--gfx950"
.text
.globl {k}
.p2align 8
.type {k},@function
"""
    a = Em()
    gen(a, opt)
    out += a.text()
    out += f""".section .rodata,"a"
.p2align 6
.amdhsa_kernel {k}
  .amdhsa_next_free_vgpr 512
  .amdhsa_next_free_sgpr 102
  .amdhsa_accum_offset 256
  .amdhsa_group_segment_fixed_size 0
  .amdhsa_kernarg_size 64
  .amdhsa_user_sgpr_count 2
  .amdhsa_user_sgpr_kernarg_segment_ptr 1
  .amdhsa_system_sgpr_workgroup_id_x 1
  .amdhsa_float_denorm_mode_32 3
.end_amdhsa_kernel
"""
    return out


if __name__ == "__main__":
    opt = {}
    path = f"cdna_kernels/{NAME}.s"
    for arg in sys.argv[1:]:
        if arg.startswith("-o="):
            path = arg[3:]
        elif "=" in arg:
            k, v = arg.split("=")
            opt[k] = int(v)
        else:
            opt[arg] = True
    txt = generate(opt)
    open(path, "w").write(txt)
    import hazard
    errs = hazard.check(txt)
    print("wrote", path, "hazards", len(errs))
    for e in errs[:20]:
        print("  ", e)
```

```python
import sys
import math
from gen1 import vr, ar, sr, f32bits, NAME
from gen7 import Em, spread

MF = "v_mfma_f32_16x16x32_bf16"
PS = 1056
KSZ = 16 * PS
SLOT = 2 * KSZ
WPS = 1040
WQSZ = 16 * WPS
QBSZ = WQSZ + 24 * PS
QB = {2: SLOT, 0: SLOT + QBSZ, 1: SLOT + 2 * QBSZ}
QEX = 3 * SLOT
LDS = 163840
WS_FLG = 16 << 20
FST = 1152
PSTR = 12288 + 384
WS_PART = (16 << 20) + (512 << 10)
WS_DIAG = 32 << 20
WS_SIZE = 64 << 20
TS = 131072 + 384
SCALE = math.log2(math.e) / math.sqrt(128.0)


def gen(a, opt):
    diag = opt.get("diag", False)
    S_X, S_WQ, S_K, S_V, S_WO, S_WS, S_DBG, S_OUT = 16, 20, 24, 28, 32, 36, 4, 8
    sW, sB, sH, sKH = 40, 43, 44, 42
    sOwn, sMask, sG, sRet = 45, 47, 49, 50
    sKl, sLb, sD = 52, 53, 54
    sA, sBt, sC = 55, 56, 57
    sSt = 60
    sXld, sWld, sRot, sXs, sWs = 91, 93, 94, 95, 96
    sMT, sNT, sOff, sOffW, sLl, sFl = 97, 98, 99, 14, 90, 15
    vL16, vL, vDmaKV, vBE, vDmaX = 0, 1, 2, 3, 4
    vK = [5, 6]
    vV = [7, 8]
    vTa, vTb = 9, 10
    vMx, vT0, vT1, vBO, vDg = 11, 12, 13, 14, 15
    OA = 16
    QF = 112
    SB = 160
    PB = 208
    CI = 232
    ET = 244
    TM = 248
    vX = [184, 185, 186]
    vW = [187, 188, 189]
    vDX = [190, 191, 192, 193, 194, 195]
    vDW = [196, 197, 198, 199]
    VO = [0, 5, 6]
    KF, VF, LA, ONES = 176, 112, 240, 252
    nt = " nt"
    nstamp = [0]

    scnt = [0]

    def stamp(extra=False):
        if not extra:
            scnt[0] += 1
            if opt.get("odiag") and scnt[0] in (2, 3, 4, 5, 6, 7, 8):
                return []
        elif not opt.get("odiag"):
            return []
        if diag:
            r = f"{'s_memrealtime' if opt.get('rt') else 's_memtime'} {sr(sSt + 2 * nstamp[0], 2)}"
            nstamp[0] += 1
            return [r]
        return []

    a(f"{NAME}_kernel:")
    a("s_cmp_ge_u32 s2, 256")
    a("s_cbranch_scc1 L_end")
    a("s_load_dwordx8 s[72:79], s[0:1], 0")
    a("s_load_dwordx8 s[80:87], s[0:1], 32")
    if diag:
        a(f"s_memrealtime {sr(58, 2)}")
    a(stamp())
    a(f"v_lshrrev_b32 v15, 6, v0")
    a(f"v_and_b32 {vr(vL)}, 63, v0")
    a(f"s_and_b32 {sr(sA)}, s2, 7")
    a(f"v_readfirstlane_b32 {sr(sW)}, v15")
    a(f"s_lshl_b32 {sr(sA)}, {sr(sA)}, 2")
    a(f"s_bfe_u32 {sr(sBt)}, s2, 0x20003")
    a(f"s_add_u32 {sr(sH)}, {sr(sA)}, {sr(sBt)}")
    a(f"s_lshr_b32 {sr(sB)}, s2, 5")
    if opt.get("hmap", 0) == 2:
        a(f"s_and_b32 {sr(sH)}, s2, 31")
    if opt.get("hmap", 0) == 4:
        a(f"s_bfe_u32 {sr(sB)}, s2, 0x30003")
        a(f"s_lshr_b32 {sr(sBt)}, s2, 6")
        a(f"s_add_u32 {sr(sH)}, {sr(sA)}, {sr(sBt)}")
    if opt.get("hmap", 0) == 3:
        a(f"s_and_b32 {sr(sB)}, s2, 1")
        a(f"s_lshl_b32 {sr(sB)}, {sr(sB)}, 2")
        a(f"s_add_u32 {sr(sB)}, {sr(sB)}, {sr(sBt)}")
        a(f"s_and_b32 {sr(sH)}, s2, 6")
        a(f"s_lshl_b32 {sr(sH)}, {sr(sH)}, 2")
        a(f"s_lshr_b32 {sr(sBt)}, s2, 5")
        a(f"s_add_u32 {sr(sH)}, {sr(sH)}, {sr(sBt)}")
    a(f"s_mul_i32 {sr(sRot)}, {sr(sBt)}, {opt.get('roth', 2)}")
    a(f"s_add_u32 {sr(sRot)}, {sr(sRot)}, {sr(sB)}")
    a(f"s_and_b32 {sr(sRot)}, {sr(sRot)}, {opt.get('rot2', 3)}")
    if opt.get("roff"):
        a(f"s_lshr_b32 {sr(sA)}, {sr(sRot)}, 1")
        a(f"s_mul_i32 {sr(sA)}, {sr(sA)}, {opt['roff']}")
        a(f"s_and_b32 {sr(sRot)}, {sr(sRot)}, 1")
        a(f"s_mul_i32 {sr(sRot)}, {sr(sRot)}, {opt.get('rlo', 1)}")
        a(f"s_add_u32 {sr(sRot)}, {sr(sRot)}, {sr(sA)}")
    a(f"v_and_b32 v15, 3, {vr(vL)}")
    a(f"v_lshlrev_b32 v14, 4, v15")
    a(f"v_lshrrev_b32 v12, 4, {vr(vL)}")
    a(f"v_lshl_add_u32 v11, v12, 6, v14")
    a(f"v_bfe_u32 v13, {vr(vL)}, 2, 2")
    a(f"v_lshl_add_u32 {vr(vDmaKV)}, v13, 8, v11")
    a(f"v_lshl_add_u32 {vr(vDW[0])}, v13, 13, v11")
    a(f"v_lshrrev_b32 v10, 5, {vr(vL)}")
    a(f"v_lshl_add_u32 v11, v10, 6, v14")
    a(f"v_bfe_u32 v9, {vr(vL)}, 2, 3")
    a(f"v_lshl_add_u32 {vr(vDmaX)}, v9, 10, v11")
    a(f"s_mul_i32 {sr(sA)}, {sr(sW)}, {16*8192}")
    a(f"v_add_u32 {vr(vDW[0])}, {sr(sA)}, {vr(vDW[0])}")
    for p in range(1, 4):
        a(f"v_add_u32 {vr(vDW[p])}, {p*(4*8192 - WPS)}, {vr(vDW[0])}")
    a(f"s_mul_i32 {sr(sA)}, {sr(sW)}, {6*8192}")
    a(f"v_add_u32 {vr(vDX[0])}, {sr(sA)}, {vr(vDmaX)}")
    for p in range(1, 6):
        a(f"v_add_u32 {vr(vDX[p])}, {p*8192 - (p%3)*PS}, {vr(vDX[0])}")
    a(f"s_mul_i32 {sr(sXld)}, {sr(sW)}, {6*PS}")
    a(f"s_lshl_b32 {sr(sWld)}, {sr(sW)}, 12")
    sWq = 92
    a(f"s_mul_i32 {sr(sWq)}, {sr(sW)}, {4*WPS}")
    a(f"s_mul_i32 {sr(sA)}, {sr(sB)}, 196608")
    a(f"s_lshl_b32 {sr(sBt)}, {sr(sH)}, 8")
    a(f"s_mov_b32 {sr(S_X+2)}, 196608")
    a(f"s_mov_b32 {sr(S_X+3)}, 0x20000")
    a(f"s_sub_u32 {sr(S_WQ+2)}, 0x400000, {sr(sBt)}")
    a(f"s_mov_b32 {sr(S_WQ+3)}, 0x20000")
    a("s_waitcnt lgkmcnt(0)")
    a(f"s_add_u32 {sr(S_X)}, s72, {sr(sA)}")
    a(f"s_addc_u32 {sr(S_X+1)}, s73, 0")
    a(f"s_add_u32 {sr(S_WQ)}, s78, {sr(sBt)}")
    a(f"s_addc_u32 {sr(S_WQ+1)}, s79, 0")

    def qgroup(s, nop=False):
        base = QB[s % 3]
        items = []
        for p in range(4):
            pre = []
            if p == 0:
                pre = [f"{'s_xor_b32' if opt.get('xr') else 's_add_u32'} {sr(sXs)}, {sr(sRot)}, {s}",
                       f"s_add_u32 m0, {sr(sWq)}, {base}",
                       f"s_and_b32 {sr(sXs)}, {sr(sXs)}, 7",
                       f"s_lshl_b32 {sr(sWs)}, {sr(sXs)}, 19"]
            post = [f"s_lshl_b32 {sr(sXs)}, {sr(sXs)}, 7"] if p == 0 else []
            if p == 3:
                post = [f"s_add_u32 m0, {sr(sXld)}, {base + WQSZ}"]
            items.append(pre + [("vm", f"Q{s}", f"buffer_load_dwordx4 {vr(vDW[p])}, {sr(S_WQ,4)}, {sr(sWs)} offen offset:{p*WPS}{' nt' if opt.get('ntq', 0) & 1 else ''} lds")] + post)
        for p in range(6):
            pre = ["s_nop 0"] if (nop and p in (0, 3)) else []
            post = [f"s_add_u32 m0, m0, {3*PS}"] if p == 2 else []
            items.append(pre + [("vm", f"Q{s}", f"buffer_load_dwordx4 {vr(vDX[p])}, {sr(S_X,4)}, {sr(sXs)} offen offset:{(p%3)*PS} lds")] + post)
        return items

    def kvpieces(isK, g, ps=range(4)):
        items = []
        for p in ps:
            items.append([f"s_add_u32 m0, {sr(sKl)}, {(g%3)*SLOT + (0 if isK else KSZ) + p*32}",
                          f"s_mov_b32 {sr(sG)}, {g*16384}",
                          ("vm", ("K" if isK else "V") + str(g),
                           f"buffer_load_dwordx4 {vr(vDmaKV)}, {sr(S_K if isK else S_V,4)}, {sr(sG)} offen offset:{p*1024}{nt} lds")])
        return items

    def w0only(lbl, mask, body):
        return [f"s_cmp_lg_u32 {sr(sW)}, 0", f"s_cbranch_scc1 {lbl}",
                (f"s_mov_b64 exec, {mask}" if mask == 1 else "s_mov_b32 exec_hi, 0")] + body + ["s_mov_b64 exec, -1", f"{lbl}:"]

    pw4 = opt.get("pw4", 0)
    PFO = 512
    sN = 92

    def mknonce():
        return [f"s_or_b32 {sr(sA)}, s2, {sr(sW)}", f"s_cmp_lg_u32 {sr(sA)}, 0", "s_cbranch_scc1 L_c1", "s_mov_b64 exec, 3",
                "s_memrealtime s[12:13]", f"v_lshlrev_b32 v8, 7, {vr(vL)}", "s_waitcnt lgkmcnt(0)", "s_or_b32 s12, s12, 1",
                f"v_mov_b32 {vr(TM+4)}, s12", f"v_mov_b32 {vr(TM+5)}, s13",
                f"buffer_store_dwordx2 {vr(TM+4,2)}, v8, {sr(S_DBG,4)}, 0 offen sc1 untracked", "s_mov_b64 exec, -1", "L_c1:"]

    def publish():
        return [f"s_cmp_lg_u32 {sr(sW)}, 0", "s_cbranch_scc1 L_c3", "s_mov_b64 exec, 0xffff",
                f"buffer_store_dwordx2 {vr(vT0,2)}, {vr(vMx)}, {sr(S_WS,4)}, {sr(sFl)} offen sc1 untracked",
                "s_mov_b64 exec, -1", "L_c3:"]

    def pubprep():
        return [f"v_and_b32 {vr(vMx)}, 1, {vr(vL)}", f"v_lshrrev_b32 {vr(vT0)}, 1, {vr(vL)}", f"v_lshl_add_u32 {vr(vMx)}, {vr(vT0)}, 2, {vr(vMx)}",
                f"v_mul_u32_u24 {vr(vMx)}, {8*FST}, {vr(vMx)}",
                f"s_and_b32 {sr(sFl)}, {sr(sB)}, 6", f"s_lshr_b32 {sr(sA)}, {sr(sH)}, 4", f"s_add_u32 {sr(sFl)}, {sr(sFl)}, {sr(sA)}",
                f"s_and_b32 {sr(sA)}, {sr(sB)}, 1", f"s_lshl_b32 {sr(sA)}, {sr(sA)}, 4", f"s_add_u32 {sr(sFl)}, {sr(sFl)}, {sr(sA)}",
                f"s_mul_i32 {sr(sFl)}, {sr(sFl)}, {FST}", f"s_and_b32 {sr(sA)}, {sr(sH)}, {3 if pw4 else 15}", f"s_lshl_b32 {sr(sA)}, {sr(sA)}, 3",
                f"s_add_u32 {sr(sFl)}, {sr(sFl)}, {sr(sA)}", f"s_and_b32 {sr(sA)}, {sr(sH)}, {12 if pw4 else 0}", f"s_lshl_b32 {sr(sA)}, {sr(sA)}, 5",
                f"s_add_u32 {sr(sFl)}, {sr(sFl)}, {sr(sA)}", f"s_add_u32 {sr(sFl)}, {sr(sFl)}, {WS_FLG}",
                f"v_mov_b32 {vr(vT0)}, {sr(sN)}", f"v_mov_b32 {vr(vT1)}, {sr(sN+1)}"]

    if opt.get("wf") == -3:
        a([f"s_lshl_b32 {sr(sA)}, s2, 14", f"s_add_u32 {sr(sA)}, {sr(sA)}, {sr(sWld)}",
           f"v_lshl_add_u32 {vr(TM+3)}, {vr(vL)}, 6, {sr(sA)}",
           ("vm", "WP", f"global_load_dword {vr(TM+3)}, {vr(TM+3)}, s[80:81]")])
    a(qgroup(0, True))
    if opt.get("cpf", 1):
        a("s_getpc_b64 s[88:89]")
        a("L_pc:")
        a(f"s_lshr_b32 {sr(sA)}, s2, 3")
        a(f"s_lshl_b32 {sr(sA)}, {sr(sA)}, 2")
        a(f"s_add_u32 {sr(sA)}, {sr(sA)}, {sr(sW)}")
        a(f"s_lshl_b32 {sr(sA)}, {sr(sA)}, 9")
        a(f"v_lshl_add_u32 v8, v12, 7, {sr(sA)}")
        a("v_min_u32 v8, L_codeend-L_pc-4, v8")
        a(("vm", "CP", f"global_load_dword {vr(TM)}, v8, s[88:89]"))
    a(f"s_lshl_b32 {sr(sA)}, {sr(sB)}, 5")
    a(f"s_add_u32 {sr(sA)}, {sr(sA)}, {sr(sH)}")
    a(f"s_lshl_b32 {sr(sA)}, {sr(sA)}, 18")
    a(f"s_add_u32 {sr(S_K)}, s74, {sr(sA)}")
    a(f"s_addc_u32 {sr(S_K+1)}, s75, 0")
    a(f"s_mov_b32 {sr(S_K+2)}, 0x40000")
    a(f"s_mov_b32 {sr(S_K+3)}, 0x20000")
    a(f"s_add_u32 {sr(S_V)}, s76, {sr(sA)}")
    a(f"s_addc_u32 {sr(S_V+1)}, s77, 0")
    a(f"s_mov_b32 {sr(S_V+2)}, 0x40000")
    a(f"s_mov_b32 {sr(S_V+3)}, 0x20000")
    if opt.get("kvt", 1):
        a("v_mov_b32 v8, 0")
        a(("vm", "CP", f"buffer_load_dword {vr(TM+1)}, v8, {sr(S_K,4)}, 0 offen nt"))
        a(("vm", "CP", f"buffer_load_dword {vr(TM+2)}, v8, {sr(S_V,4)}, 0 offen nt"))
    if opt.get("st", 0):
        a(f"s_lshl_b32 {sr(sA)}, {sr(sW)}, 20")
        a(f"v_mov_b32 v8, {sr(sA)}")
        a(("vm", "CP", f"buffer_load_dword {vr(TM+6)}, v8, {sr(S_WQ,4)}, 0 offen"))
        a(("vm", "CP", f"global_load_dword {vr(TM+7)}, v8, s[80:81]"))
    a(f"s_mov_b32 {sr(S_WS)}, s86")
    a(f"s_mov_b32 {sr(S_WS+1)}, s87")
    a(f"s_mov_b32 {sr(S_WS+2)}, {WS_SIZE}")
    a(f"s_mov_b32 {sr(S_WS+3)}, 0x20000")
    a(f"s_mov_b32 {sr(S_DBG)}, s84")
    a(f"s_mov_b32 {sr(S_DBG+1)}, s85")
    a(f"s_mov_b32 {sr(S_DBG+2)}, 256")
    a(f"s_mov_b32 {sr(S_DBG+3)}, 0x20000")
    a(mknonce())
    a(f"s_mov_b32 {sr(S_OUT)}, s82")
    a(f"s_mov_b32 {sr(S_OUT+1)}, s83")
    a(f"s_mov_b32 {sr(S_OUT+2)}, {1536*1024}")
    a(f"s_mov_b32 {sr(S_OUT+3)}, 0x20000")
    a(f"v_add_u32 {vr(vDmaKV)}, {sr(sWld)}, {vr(vDmaKV)}")
    a(f"s_mul_i32 {sr(sKl)}, {sr(sW)}, {4*PS}")
    nat = opt.get("nat", 0)
    a(f"v_lshlrev_b32 v11, {3 if nat else 4}, v15")
    a(f"v_lshl_add_u32 v11, v13, 6, v11")
    a(f"v_mul_u32_u24 v9, {2*WPS}, v12")
    a(f"v_add_u32 v11, v9, v11")
    for r in range(3):
        a(f"v_add_u32 {vr(vW[r])}, {QB[r]}, v11")
    a(f"v_lshlrev_b32 v9, 3, v15")
    a(f"v_lshl_add_u32 v9, v13, 6, v9")
    a(f"v_lshl_add_u32 v11, v10, 10, v9")
    a(f"v_and_b32 v8, 1, v12")
    a(f"v_lshl_add_u32 v11, v8, 8, v11")
    a(f"v_lshl_add_u32 {vr(vBE)}, v8, 5, v11")
    a(f"v_xor_b32 {vr(vBO)}, 32, {vr(vBE)}")
    a(f"v_lshlrev_b32 v8, 5, v8")
    a(f"v_xor_b32 {vr(vDmaX)}, v8, {vr(vDmaX)}")
    a(f"v_mul_u32_u24 v11, {PS}, v12")
    a(f"v_add_u32 v11, v11, v9")
    a(f"v_add_u32 {vr(vV[0])}, {KSZ}, v11")
    a(f"v_add_u32 {vr(vV[1])}, {KSZ + 2*SLOT}, v11")
    a(f"v_mul_u32_u24 v11, {PS}, v13")
    a(f"v_lshl_add_u32 v11, v15, 6, v11")
    a(f"v_lshl_add_u32 {vr(vK[0])}, v12, 4, v11")
    a(f"v_add_u32 {vr(vK[1])}, {2*SLOT}, {vr(vK[0])}")
    a(f"v_bfe_u32 v11, {vr(vL)}, 3, 1")
    a(f"v_mul_u32_u24 v11, {PS}, v11")
    a(f"v_and_b32 v9, 7, {vr(vL)}")
    a(f"v_lshl_add_u32 v11, v9, 6, v11")
    a(f"v_lshl_add_u32 v11, v12, 4, v11")
    a(f"v_add_u32 v11, {sr(sXld)}, v11")
    for r in range(3):
        a(f"v_add_u32 {vr(vX[r])}, {QB[r] + WQSZ}, v11")
    a(f"v_lshlrev_b32 {vr(vL16)}, 4, {vr(vL)}")
    a(f"s_bfe_u32 {sr(sA)}, s2, 0x20001")
    a(f"s_lshl_b32 {sr(sA)}, {sr(sA)}, 2")
    a(f"s_bfe_u32 {sr(sBt)}, s2, 0x20003")
    a(f"s_add_u32 {sr(sMT)}, {sr(sA)}, {sr(sBt)}")
    a(f"s_lshr_b32 {sr(sNT)}, s2, 5")
    a(f"s_and_b32 {sr(sKH)}, s2, 1")
    a(f"s_mul_i32 {sr(sC)}, {sr(sNT)}, {opt.get('rn', 1)}")
    a(f"s_mul_i32 {sr(sBt)}, {sr(sBt)}, {opt.get('rm', 4)}")
    a(f"s_add_u32 {sr(sOff)}, {sr(sC)}, {sr(sBt)}")
    a(f"s_and_b32 {sr(sOff)}, {sr(sOff)}, 15")
    a(f"s_lshl_b32 {sr(sOffW)}, {sr(sOff)}, 15")
    a(f"s_lshl_b32 {sr(sOff)}, {sr(sOff)}, 10")
    a(f"s_lshl_b32 {sr(sA)}, {sr(sNT)}, 7")
    a(f"s_sub_u32 {sr(S_WO+2)}, 0x80000, {sr(sA)}")
    a(f"s_lshl_b32 {sr(sBt)}, {sr(sW)}, 19")
    a(f"s_add_u32 {sr(sA)}, {sr(sA)}, {sr(sBt)}")
    a(f"s_lshl_b32 {sr(sBt)}, {sr(sKH)}, 21")
    a(f"s_add_u32 {sr(sA)}, {sr(sA)}, {sr(sBt)}")
    a(f"s_add_u32 {sr(S_WO)}, s80, {sr(sA)}")
    a(f"s_addc_u32 {sr(S_WO+1)}, s81, 0")
    a(f"s_mov_b32 {sr(S_WO+3)}, 0x20000")
    a(f"s_mul_i32 {sr(sLl)}, {sr(sW)}, 15360")
    a(f"s_add_u32 {sr(sLl)}, {sr(sLl)}, {QEX}")
    a(f"s_lshl_b32 {sr(sLb)}, {sr(sW)}, 12")
    a(f"s_mul_i32 {sr(sOwn)}, s2, {FST}")
    a(f"s_add_u32 {sr(sOwn)}, {sr(sOwn)}, {WS_FLG}")
    a(f"s_mov_b32 {sr(sMask)}, 0x40004000")
    a(f"v_mov_b32 v11, 0x3f803f80")
    if opt.get("sp1", 1):
        if opt.get("sp1", 1) == 2:
            a(f"v_and_b32 v15, 15, {vr(vL)}")
        a("v_cmp_eq_u32 vcc, 0, v15")
        a("s_nop 1")
        a("v_cndmask_b32 v11, 0, v11, vcc")
    a(f"s_mov_b32 {sr(sC)}, {hex(f32bits(SCALE))}")
    a(f"s_mov_b32 {sr(sBt)}, {sr(sC)}")
    for r in range(4):
        a(f"v_accvgpr_write_b32 {ar(ONES+r)}, v11")
    K, V = True, False
    wq_touch = [f"s_lshr_b32 {sr(sA)}, s2, 1", f"s_lshl_b32 {sr(sA)}, {sr(sA)}, 14", f"s_add_u32 {sr(sA)}, {sr(sA)}, {sr(sWld)}",
                f"s_lshl_b32 {sr(sD)}, {sr(sKH)}, 21", f"s_add_u32 {sr(sA)}, {sr(sA)}, {sr(sD)}",
                f"v_lshl_add_u32 {vr(TM+3)}, {vr(vL)}, 6, {sr(sA)}",
                ("vm", "WP", f"global_load_dword {vr(TM+3)}, {vr(TM+3)}, s[80:81]")]
    if opt.get("fol", 0):
        wq_touch = [f"s_bitcmp1_b32 {sr(sRot)}, 1", "s_cbranch_scc1 L_not",
                    f"s_bfe_u32 {sr(sA)}, s2, 0x20001", f"s_lshr_b32 {sr(sD)}, s2, 4", f"s_lshl_b32 {sr(sD)}, {sr(sD)}, 2",
                    f"s_add_u32 {sr(sA)}, {sr(sA)}, {sr(sD)}", f"s_lshl_b32 {sr(sA)}, {sr(sA)}, 2", f"s_add_u32 {sr(sA)}, {sr(sA)}, {sr(sW)}",
                    f"s_lshl_b32 {sr(sA)}, {sr(sA)}, 13", f"s_lshl_b32 {sr(sD)}, {sr(sKH)}, 21", f"s_add_u32 {sr(sA)}, {sr(sA)}, {sr(sD)}",
                    f"v_lshl_add_u32 {vr(TM+3)}, {vr(vL)}, 7, {sr(sA)}",
                    f"global_load_dword {vr(TM+3)}, {vr(TM+3)}, s[80:81]", "L_not:"]
    def tlbtouch(r):
        return [f"s_mul_i32 {sr(sA)}, {sr(sB)}, 12", f"s_mul_i32 {sr(sD)}, {sr(sMT)}, 6",
                f"v_min_u32 {vr(r)}, 11, {vr(vL)}", f"v_add_u32 {vr(r)}, {sr(sA)}, {vr(r)}",
                f"v_mov_b32 {vr(r+1)}, {sr(sD)}", f"v_cmp_lt_u32 vcc, 31, {vr(vL)}", f"s_mov_b32 {sr(sA)}, {TS}", "s_nop 0",
                f"v_cndmask_b32 {vr(r)}, {vr(r)}, {vr(r+1)}, vcc", f"v_mul_lo_u32 {vr(r)}, {vr(r)}, {sr(sA)}",
                f"s_mov_b32 {sr(sA)}, {131072+128}", f"v_mov_b32 {vr(r+1)}, 0",
                ("vm", "TL", f"buffer_load_dword {vr(vTa)}, {vr(r)}, {sr(S_WS,4)}, {sr(sA)} offen"),
                ("vm", "TL", f"buffer_load_dword {vr(vTa)}, {vr(r+1)}, {sr(S_OUT,4)}, 0 offen")] + (
                [f"s_mul_i32 {sr(sA)}, s2, {PSTR}", f"s_add_u32 {sr(sA)}, {sr(sA)}, {WS_PART + 12288 + 128}",
                 ("vm", "TL", f"buffer_load_dword {vr(vTa)}, {vr(r+1)}, {sr(S_WS,4)}, {sr(sA)} offen")] if opt.get("pt", 1) else []) + [
                ("vm", "TL", f"buffer_load_dword {vr(vTa)}, {vr(r+1)}, {sr(S_WS,4)}, {sr(sOwn)} offen offset:896")] + (
                [f"s_lshl_b32 {sr(sA)}, {sr(sW)}, 7", f"s_add_u32 {sr(sA)}, {sr(sA)}, {sr(sOwn)}", f"v_mov_b32 {vr(r)}, {sr(sA)}",
                 ("vm", "TL", f"buffer_load_dword {vr(vTa)}, {vr(r)}, {sr(S_WS,4)}, 0 offen sc1"),
                 f"s_cmp_eq_u32 {sr(sW)}, 0", f"s_cselect_b32 {sr(sA)}, {sr(sOwn)}, {WS_SIZE}", f"v_mov_b32 {vr(r)}, {sr(sA)}",
                 ("vm", "TL", f"buffer_load_dword {vr(vTa)}, {vr(r)}, {sr(S_WS,4)}, 0 offen offset:{PFO} sc1")] if opt.get("fw", 0) else []) + [
                ("vm", "TL", f"buffer_load_dword {vr(vTa)}, {vr(r+1)}, {sr(S_WO,4)}, 0 offen")]

    def onetouch(r):
        ld = lambda srd, so, extra="": f"buffer_load_dword {vr(vTa)}, {vr(r)}, {sr(srd,4)}, {so} offen{extra} untracked"
        return [f"s_lshr_b32 {sr(sA)}, s2, 3", f"s_or_b32 {sr(sA)}, {sr(sA)}, {sr(sW)}", f"s_cmp_lg_u32 {sr(sA)}, 0", "s_cbranch_scc1 L_t1",
                f"v_min_u32 {vr(r)}, 23, {vr(vL)}", f"s_mov_b32 {sr(sA)}, {4*TS}", f"v_mul_lo_u32 {vr(r)}, {vr(r)}, {sr(sA)}",
                f"s_mov_b32 {sr(sA)}, {131072+128}", ld(S_WS, sr(sA)),
                f"v_min_u32 {vr(r)}, 7, {vr(vL)}", f"s_mov_b32 {sr(sA)}, {32*PSTR}", f"v_mul_lo_u32 {vr(r)}, {vr(r)}, {sr(sA)}",
                f"s_mov_b32 {sr(sA)}, {WS_PART + 31*PSTR + 12288 + 128}", ld(S_WS, sr(sA)),
                f"v_min_u32 {vr(r)}, 2, {vr(vL)}", f"v_lshlrev_b32 {vr(r)}, 19, {vr(r)}", ld(S_OUT, "0"),
                f"v_mov_b32 {vr(r)}, 0", ld(S_WS, sr(sOwn), " offset:896"), ld(S_DBG, "0", " offset:128 sc1"), "L_t1:"]
    if opt.get("tq", -9) == -4:
        a(onetouch(vT0))
    if opt.get("tq", -9) == -2:
        a(tlbtouch(vT0))
    if opt.get("wf") == -2:
        a(wq_touch)
    a(qgroup(1, True))
    if opt.get("wf") == -1:
        a(wq_touch)

    def xf(r, qt, ks):
        return 88 * r + (qt * 2 + ks) * 4

    def wf(r, t, ks):
        return 88 * r + 24 + (t * 2 + ks) * 4

    def qreads(s):
        r = s & 1
        b = s % 3
        out = []
        for ks in range(2):
            for qt in range(3):
                out.append(("ds", f"F{s}", f"ds_read_b128 {ar(xf(r,qt,ks),4)}, {vr(vX[b])} offset:{qt*2*PS + ks*512}"))
            for t in range(8):
                for i in range(2):
                    out.append(("ds", f"F{s}", f"ds_read_b64_tr_b16 {ar(wf(r,t,ks)+2*i, 2)}, {vr(vW[b])} offset:{(8*ks+i)*WPS + (t>>1)*256 + (t&1)*(32 if nat else 8)}"))
        return out

    def qacc(qt, t):
        return OA + (qt * 8 + t) * 4

    def qmfmas(s):
        r = s & 1
        out = []
        if s == 7:
            order = [(ks, t, qt) for qt in range(3) for t in range(8) for ks in range(2)]
        else:
            order = [(ks, t, qt) for t in range(8) for qt in range(3) for ks in range(2)] if opt.get("qch", 1) else \
                    [(ks, t, qt) for ks in range(2) for t in range(8) for qt in range(3)]
        for ks, t, qt in order:
            acc = vr(qacc(qt, t), 4)
            c = "0" if (s == 0 and ks == 0) else acc
            out.append(f"{MF} {acc}, {ar(wf(r,t,ks),4)}, {ar(xf(r,qt,ks),4)}, {c}")
        return out

    def fin(qt):
        acc = qacc(qt, 0)
        out = []
        for e in range(16):
            if opt.get("pkm", 1):
                out.append(f"v_pk_mul_f32 {vr(acc+2*e,2)}, {vr(acc+2*e,2)}, {sr(sBt,2)}")
            else:
                out += [f"v_mul_f32 {vr(acc+2*e+h)}, {sr(sC)}, {vr(acc+2*e+h)}" for h in range(2)]
            if e >= 1:
                out.append(f"v_cvt_pk_bf16_f32 {vr(QF+qt*16+e-1)}, {vr(acc+2*e-2)}, {vr(acc+2*e-1)}")
        out.append(f"v_cvt_pk_bf16_f32 {vr(QF+qt*16+15)}, {vr(acc+30)}, {vr(acc+31)}")
        if nat:
            prs = [(QF + qt * 16 + 4 * ks + h, QF + qt * 16 + 4 * ks + 2 + h) for ks in range(4) for h in range(2)]
            out += [f"v_permlane32_swap_b32 {vr(x)}, {vr(y)}" for x, y in prs]
            out += [f"v_permlane16_swap_b32 {vr(x)}, {vr(y)}" for x, y in prs]
        return out

    def kread(g, n):
        sl = g % 3
        kt, ks = n // 4, n % 4
        return ("ds", f"k{g}_{n}", f"ds_read_b128 {ar(KF+4*n,4)}, {vr(vK[sl>>1])} offset:{(sl&1)*SLOT + kt*4*PS + ks*256}")

    VF2 = 80

    def vfr(g, m):
        return (VF2 if (m < 8 and g % 2 == 0) else VF) + 4 * m

    def vread(g, m, i):
        sl = g % 3
        dt, blk = m // 2, m % 2
        return ("ds", f"v{g}_{m}", f"ds_read_b64_tr_b16 {ar(vfr(g,m)+2*i,2)}, {vr(vV[sl>>1])} offset:{(sl&1)*SLOT + blk*8*PS + 4*i*PS + (dt>>1)*256 + (dt&1)*32}")

    def qk(j, first=False):
        out = []
        for n in range(16):
            kt, ks = n // 4, n % 4
            d = vr(SB + 16 * j + 4 * kt, 4)
            c = ("0" if first else vr(CI + 4 * j, 4)) if ks == 0 else d
            out.append(f"{MF} {d}, {ar(KF+4*n,4)}, {vr(QF+j*16+ks*4,4)}, {c}")
        return out

    def pv(g, j, first=False, sumfirst=False):
        out = []
        for m in range(16):
            dt, blk = m // 2, m % 2
            d = vr(OA + (j * 8 + dt) * 4, 4)
            out.append(f"{MF} {d}, {ar(vfr(g,m),4)}, {vr(PB+8*j+4*blk,4)}, {'0' if (first and blk == 0) else d}")
        d = ar(LA + 4 * j, 4)
        sm = [f"{MF} {d}, {ar(ONES,4)}, {vr(PB+8*j+4*blk,4)}, {'0' if (first and blk == 0) else d}" for blk in range(2)]
        return sm + out if sumfirst else out + sm

    a(("wait", ["Q0"], None))
    a("s_barrier")
    a(stamp())
    a(qreads(0))
    es = opt.get("es", 20)
    if not es:
        a(qgroup(2, True))
    plans = {
        3: {4: qgroup(7) + kvpieces(K, 0) + kvpieces(V, 0), 5: kvpieces(K, 1), 6: kvpieces(V, 1), 7: kvpieces(K, 2)},
        5: {4: qgroup(7) + kvpieces(K, 0), 5: kvpieces(K, 1), 6: kvpieces(V, 0), 7: kvpieces(V, 1), 8: kvpieces(K, 2)},
        6: {4: qgroup(7) + kvpieces(K, 0), 5: kvpieces(V, 0) + kvpieces(K, 1), 6: kvpieces(V, 1), 7: kvpieces(K, 2)},
        9: {4: qgroup(7) + kvpieces(K, 0), 5: kvpieces(V, 0), 6: kvpieces(K, 1), 7: kvpieces(V, 1)},
        10: {4: qgroup(7) + kvpieces(K, 0), 5: kvpieces(V, 0) + kvpieces(K, 1), 6: kvpieces(V, 1), 7: []},
        7: {4: qgroup(7) + kvpieces(K, 0), 5: kvpieces(V, 0) + kvpieces(K, 1), 6: kvpieces(V, 1) + kvpieces(K, 2, range(2)), 7: kvpieces(K, 2, range(2, 4)) + kvpieces(V, 2)},
        8: {4: qgroup(7) + kvpieces(K, 0), 5: kvpieces(V, 0) + kvpieces(K, 1), 6: kvpieces(V, 1), 7: kvpieces(K, 2), 8: kvpieces(V, 2)},
    }
    plan = {s: qgroup(s + 3) for s in range(5)}
    plan.update(plans[opt.get("plan", 6)])
    if opt.get("tq", -9) >= 0:
        k_ = opt.get("tq", -9)
        plan[k_] = plan[k_][:10] + [tlbtouch(vT0)] + plan[k_][10:]
    if opt.get("wf", 0) >= 0:
        k_ = opt.get("wf", 0)
        nq = 10 if k_ < 5 else 0
        plan[k_] = plan[k_][:nq] + [wq_touch] + plan[k_][nq:]
    qd = opt.get("qdiag")
    for s in range(8):
        fill = {}
        if s == 0 and es:
            a(("wait", None, ["F0"]))
            spread(fill, qgroup(2), 0, es)
            fill.setdefault(es, []).extend([("wait", ["Q1"], None), "s_barrier"])
            if qd:
                fill[es] += ["s_memtime s[88:89]", "s_waitcnt lgkmcnt(0)", f"v_writelane_b32 {vr(vDg)}, s88, 0"]
            spread(fill, qreads(1), es + 1, 46)
            spread(fill, plan[0], es + 1, 48)
            a.spine(qmfmas(0), fill)
            continue
        if qd:
            a("s_memtime s[100:101]")
        a(("wait", [f"Q{s+1}"] if s < 7 else ["K0"], "all" if qd else [f"F{s}"]))
        a("s_barrier")
        if qd:
            a([f"v_writelane_b32 {vr(vDg)}, s100, {s}", f"v_writelane_b32 {vr(vDg)}, s88, {16+s}", "s_memtime s[88:89]"])
        if s < 7:
            spread(fill, qreads(s + 1), 0, 44)
        if plan[s]:
            spread(fill, plan[s], 0, 48)
        if s == 7:
            spread(fill, [kread(0, n) for n in range(16)], 0, 20)
            lag = opt.get("lag", 4)
            carry = []
            for k in range(24):
                acc = OA + 4 * k
                it = [f"v_mul_f32 {vr(acc+r)}, {sr(sC)}, {vr(acc+r)}" for r in range(4)]
                it += [f"v_cvt_pk_bf16_f32 {vr(QF+2*k+h)}, {vr(acc+2*h)}, {vr(acc+2*h+1)}" for h in range(2)]
                g = 2 * k + 1 + lag
                parts = [it[:3], it[3:]]
                if nat and k >= 2 and k % 2 == 0:
                    b_ = QF + 2 * (k - 2)
                    parts[0] = parts[0] + [f"v_permlane32_swap_b32 {vr(b_+h)}, {vr(b_+2+h)}" for h in range(2)]
                    parts[1] = parts[1] + [f"v_permlane16_swap_b32 {vr(b_+h)}, {vr(b_+2+h)}" for h in range(2)]
                for h in range(2):
                    if g + h < 48:
                        fill.setdefault(g + h, []).extend(parts[h])
                    else:
                        carry += parts[h]
            if nat:
                b_ = QF + 44
                carry += ["s_nop 1"] + [f"v_permlane32_swap_b32 {vr(b_+h)}, {vr(b_+2+h)}" for h in range(2)] + ["s_nop 0"] + \
                         [f"v_permlane16_swap_b32 {vr(b_+h)}, {vr(b_+2+h)}" for h in range(2)]
        a.spine(qmfmas(s), fill)
    a(stamp())

    def rowmax(j):
        s_ = SB + 16 * j
        m, m2, t = TM, TM + 1, TM + 2
        out = [f"v_max3_f32 {vr(m)}, {vr(s_)}, {vr(s_+1)}, {vr(s_+2)}", f"v_max3_f32 {vr(m2)}, {vr(s_+3)}, {vr(s_+4)}, {vr(s_+5)}",
               f"v_max3_f32 {vr(m)}, {vr(m)}, {vr(s_+6)}, {vr(s_+7)}", f"v_max3_f32 {vr(m2)}, {vr(m2)}, {vr(s_+8)}, {vr(s_+9)}",
               f"v_max3_f32 {vr(m)}, {vr(m)}, {vr(s_+10)}, {vr(s_+11)}", f"v_max3_f32 {vr(m2)}, {vr(m2)}, {vr(s_+12)}, {vr(s_+13)}",
               f"v_max3_f32 {vr(m)}, {vr(m)}, {vr(s_+14)}, {vr(s_+15)}", f"v_max_f32 {vr(m)}, {vr(m)}, {vr(m2)}"]
        for op in ("v_permlane32_swap_b32", "v_permlane16_swap_b32"):
            out += [f"v_mov_b32 {vr(t)}, {vr(m)}", "s_nop 1", f"{op} {vr(t)}, {vr(m)}", "s_nop 1", f"v_max_f32 {vr(m)}, {vr(m)}, {vr(t)}"]
        return out

    def softmax_first(j):
        s_, P = SB + 16 * j, PB + 8 * j
        out = rowmax(j) + [f"v_sub_f32 {vr(CI+4*j+r)}, 0xc1000000, {vr(TM)}" for r in range(4)]
        for e in range(16):
            out.append(f"v_add_f32 {vr(s_+e)}, {vr(s_+e)}, {vr(CI+4*j)}")
            if e >= 1:
                out.append(f"v_exp_f32 {vr(s_+e-1)}, {vr(s_+e-1)}")
            if e >= 3 and e % 2 == 1:
                out.append(f"v_cvt_pk_bf16_f32 {vr(P+(e-3)//2)}, {vr(s_+e-3)}, {vr(s_+e-2)}")
        out += [f"v_exp_f32 {vr(s_+15)}, {vr(s_+15)}", "s_nop 0", f"v_cvt_pk_bf16_f32 {vr(P+7)}, {vr(s_+14)}, {vr(s_+15)}"]
        return out

    def softmax_items(j):
        s_, P = SB + 16 * j, PB + 8 * j
        ex = [f"v_exp_f32 {vr(ET+(e&3))}, {vr(s_+e)}" for e in range(16)]
        cv = [f"v_cvt_pk_bf16_f32 {vr(P+k)}, {vr(ET+((2*k)&3))}, {vr(ET+((2*k+1)&3))}" for k in range(8)]
        ors = [f"v_or3_b32 {vr(vMx)}, {vr(P)}, {vr(P+1)}, {vr(P+2)}"]
        ors += [f"v_or3_b32 {vr(vMx)}, {vr(vMx)}, {vr(P+k)}, {vr(P+k+1)}" for k in (3, 5)]
        fin_ = [f"v_bitop3_b32 {vr(vMx)}, {vr(vMx)}, {vr(P+7)}, {sr(sMask)} bitop3:0xa8", f"v_cmp_ne_u32 vcc, 0, {vr(vMx)}"]
        return ex, cv, ors, fin_

    stubs = []

    def chk(i, j):
        stubs.append((i, j))
        return [f"s_cbranch_vccnz L_st{i}_{j}", f"L_bk{i}_{j}:"]

    NRK = 16
    NK = 16
    WREG = [("a", 16 * n) for n in range(7)] + [("a", KF + 16 * n) for n in range(4)] + [("a", VF + 16 * n) for n in range(4)] + [("a", LA)]
    assert len(WREG) == NRK

    def wreg(f, n=4, o=0):
        k, t = f // 4, f % 4
        if k >= NRK:
            k -= NRK
        ty, b = WREG[k]
        return (ar if ty == "a" else vr)(b + 4 * t + o, n)

    LOCS = {f"A{k}": (sLl, k * 4096) for k in range(3)}
    for k, off in enumerate([SLOT, SLOT + KSZ, 2 * SLOT, 2 * SLOT + KSZ, 0, KSZ]):
        LOCS[f"B{k}"] = (sLb, off)
    wloc = {}
    locbusy = {}
    dnext = [0]
    rnext = [0]
    free = []

    def D(loc, solo=False):
        n = dnext[0]
        dnext[0] += 1
        assert n < NK
        wloc[n] = loc
        sb, off = LOCS[loc]
        items = []
        for p in range(4):
            pre = []
            if p == 0:
                if loc in locbusy:
                    assert locbusy[loc] < rnext[0], (loc, n)
                    pre.append(("wait", None, [f"t{locbusy[loc]}"]))
                pre += [f"s_add_u32 m0, {sr(sb)}, {off}", f"s_mov_b32 {sr(sD)}, {sr(sOffW)}"]
            elif solo:
                pre += [f"s_add_u32 m0, {sr(sb)}, {off}", "s_nop 0"]
            post = [f"s_add_u32 {sr(sD)}, {sr(sD)}, 7168"] if p < 3 else \
                   [f"s_add_u32 {sr(sOffW)}, {sr(sOffW)}, 32768", f"s_and_b32 {sr(sOffW)}, {sr(sOffW)}, 0x7ffff"]
            items.append(pre + [("vm", f"W{n}", f"buffer_load_dwordx4 {vr(vDmaX)}, {sr(S_WO,4)}, {sr(sD)} offen offset:{p*1024}{' nt' if n < opt.get('ntw', 0) else ''} lds")] + post)
        locbusy[loc] = n
        return items

    def Rd():
        n = rnext[0]
        rnext[0] += 1
        sb, off = LOCS[wloc[n]]
        free.append(wloc[n])
        items = [[f"s_add_u32 {sr(sA)}, {sr(sb)}, {off}", f"v_add_u32 {vr(vTa)}, {sr(sA)}, {vr(vBE)}",
                  f"v_add_u32 {vr(vTb)}, {sr(sA)}, {vr(vBO)}", ("wait", [f"W{n}"], None)]]
        for t in range(4):
            for i2 in range(2):
                items.append(("ds", f"t{n}", f"ds_read_b64_tr_b16 {wreg(4*n+t, 2, 2*i2)}, {vr(vTb if t & 1 else vTa)} offset:{2*i2*1024 + (t>>1)*512}"))
        return items

    def ops(spec):
        out = []
        for ch in spec:
            out += D(free.pop(0)) if ch == "D" else Rd()
        return out

    def mix(main, extra, start=0):
        out = []
        n, m = len(main) - start, len(extra)
        k = 0
        for i, x in enumerate(main):
            out.append(x)
            if i >= start:
                while k < m and k * n < (i - start + 1) * m:
                    out.append(extra[k]); k += 1
        out += extra[k:]
        return out

    G = 34
    itd = opt.get("itdiag")
    fills = {(i, j): {g: [] for g in range(G)} for i in range(17) for j in range(3)}

    def F(i, g):
        i += g // (3 * G)
        g %= 3 * G
        return fills[(i, g // G)][g % G]

    def cost(lst):
        c = 0
        for x in lst:
            if isinstance(x, list):
                c += cost(x)
            elif isinstance(x, str):
                c += 0 if x.endswith(":") else (8 if x.startswith("v_exp") else 4)
            elif x[0] in ("vm", "ds"):
                c += 4
        return c

    def barrier(i):
        need = [f"V{i}"] + ([f"K{i+1}"] if (i < 15 and not (opt.get("kbar") and i > 0)) else [])
        if opt.get("itrt"):
            return [("wait", need, None), "s_barrier", f"v_writelane_b32 {vr(vDg)}, s100, {i}", f"v_writelane_b32 {vr(vDg)}, s88, {20+i}",
                    "s_memtime s[100:101]", "s_memrealtime s[88:89]"]
        if itd:
            return ["s_memtime s[100:101]", ("wait", need, "all"), "s_barrier", f"v_writelane_b32 {vr(vDg)}, s100, {i}",
                    f"v_writelane_b32 {vr(vDg)}, s88, {16+i}", "s_memtime s[88:89]"]
        return [("wait", need, None), "s_barrier"]

    for i in range(1, 16):
        for j in range(3):
            if (i, j) == (15, 2):
                continue
            f = fills[(i, j)]
            ex, cv, ors, fin_ = softmax_items(j)
            for e in range(16):
                f[2 * e].append(ex[e])
                if e & 1:
                    f[2 * e + 1].append(cv[e // 2])
            for k, g in enumerate((13, 21, 29)):
                f[g].append(ors[k])
            f[32] += fin_
            if (i, j) == (15, 1):
                f[33] += chk(i, j)
            else:
                F(i, G * (j + 1) + 1).extend(chk(i, j))
    bg = opt.get("bg", 2)
    dpos = [11, 23, G + 3, G + 15, G + 27, 2 * G + 9, 2 * G + 19, 2 * G + 29]
    for i in range(16):
        dm = (kvpieces(V, i + 2) if i + 2 < 16 else []) + (kvpieces(K, i + 3) if i + 3 < 16 else [])
        if opt.get("short"):
            dm = (kvpieces(K, i + 2) + kvpieces(V, i + 2)) if i + 2 < 16 else []
        if opt.get("kbar") == 2:
            dm = (kvpieces(K, i + 3) + kvpieces(V, i + 3)) if i + 3 < 16 else []
        for n, it in enumerate(dm):
            g = dpos[n]
            if i == 0 and opt.get("short"):
                g = [3, 7, 11, G + 3, G + 15, G + 27, 2 * G + 11, 2 * G + 25][n]
            elif i == 0:
                g = [G + 3, G + 11, G + 19, G + 27, 2 * G + 3, 2 * G + 11, 2 * G + 19, 2 * G + 29][n]
            F(i, g - 1).extend(it[:2] if n % 4 == 0 else it[:1])
            F(i, g).insert(0, it[2])
            pat = None
            for k_ in (1, 2, 3):
                ci, cp = opt.get(f"c{k_}i", {1: 6, 2: 9, 3: 12}[k_]), opt.get(f"c{k_}", {1: 6, 2: 5, 3: 4}[k_])
                if i >= ci:
                    pat = str(cp)
            ramp = str(opt.get("ramp", ""))
            if i < len(ramp):
                pat = ramp[i]
            if pat:
                F(i, g).insert(0, ("capkv", int(pat[(8 * i + n) % len(pat)]) - 1))
    bud = opt.get("bud", 8)
    for i in range(16):
        if i > 0:
            F(i, bg).extend(barrier(i))
        reqs = [((bg + 1 if m < 8 else 16 + m) if i > 0 else G, G + 16 + (m & ~3) - (8 if i > 0 else 4), vread(i, m, h)) for m in range(16) for h in range(2)]
        if i < 15:
            reqs += [(max(G + n, G + opt.get("kst", 0) if i > 0 else 0), 2 * G + (n & ~3) - 8, kread(i + 1, n)) for n in range(16)]
        cur = 0
        firstk = None
        for lo, hi, it in reqs:
            g = max(lo, cur)
            while g < hi and cost(F(i, g)) + 4 > (bud if i > 0 else 8):
                g += 1
            lst = F(i, g)
            if lst and isinstance(lst[0], tuple) and lst[0][0] in ("ds",):
                k = 0
                while k < len(lst) and isinstance(lst[k], tuple) and lst[k][0] == "ds":
                    k += 1
                lst.insert(k, it)
            else:
                lst.insert(0, it)
            cur = g
            if firstk is None and it[1].startswith("k"):
                firstk = g
        if opt.get("kbar") == 2 and i < 15:
            pos = firstk - 1 if i > 0 else G + 33
            assert pos < (dpos[4] - 1 if i > 0 else 2 * G + 2), (pos, i)
            F(i, pos).extend([("wait", [f"K{i+1}"], [f"v{i}_15"]), "s_barrier"])
        elif opt.get("kbar") and 0 < i < 15:
            F(i, firstk - 1).extend([("wait", [f"K{i+1}"], None), "s_barrier"])
        for m in ((0, 8, 12) if i > 0 else (0, 4, 8, 12)):
            F(i, G + 16 + m - 1).append(("wait", None, [f"v{i}_{m + (7 if (i > 0 and m == 0) else 3)}"]))
        if i < 15:
            for n in range(0, 16, 4):
                F(i, 2 * G + n - 1).append(("wait", None, [f"k{i+1}_{n+3}"]))
    if opt.get("lt"):
        F(12, 2 * G + 11).extend([f"s_lshr_b32 {sr(sA)}, s2, 3", f"s_lshl_b32 {sr(sA)}, {sr(sA)}, 16", f"s_lshl_b32 {sr(sD)}, {sr(sW)}, 12",
                                  f"s_add_u32 {sr(sA)}, {sr(sA)}, {sr(sD)}", f"s_lshl_b32 {sr(sD)}, {sr(sKH)}, 21", f"s_add_u32 {sr(sA)}, {sr(sA)}, {sr(sD)}",
                                  f"v_lshl_add_u32 {vr(TM+6)}, {vr(vL)}, 6, {sr(sA)}"])
        g0, st = opt.get("lt0", G + 27), opt.get("lts", 24)
        for k in range(4):
            F(13, g0 + k * st).extend([("vm", "WP", f"global_load_dword {vr(TM+7)}, {vr(TM+6)}, s[80:81]{' nt' if opt['lt'] == 1 else ''}"),
                                       f"v_add_u32 {vr(TM+6)}, 0x4000, {vr(TM+6)}"])
    if opt.get("wtr"):
        npart, wt0 = opt["wtr"], opt.get("wt0", 1)
        sh = {2: 2, 4: 3, 8: 4}[npart]
        F(wt0, 2 * G + 11).extend([f"s_lshr_b32 {sr(sA)}, s2, 1", f"s_lshl_b32 {sr(sA)}, {sr(sA)}, 14", f"s_lshl_b32 {sr(sD)}, {sr(sW)}, 12",
                                   f"s_add_u32 {sr(sA)}, {sr(sA)}, {sr(sD)}", f"s_lshl_b32 {sr(sD)}, {sr(sKH)}, 21", f"s_add_u32 {sr(sA)}, {sr(sA)}, {sr(sD)}",
                                   f"v_lshrrev_b32 {vr(vTb)}, {sh}, {vr(vL)}", f"v_lshl_add_u32 {vr(vTb)}, {vr(vTb)}, 7, {sr(sA)}"])
        for k in range(npart):
            F(wt0 + k, 2 * G + 15).append(("vm", "WP", f"global_load_dword {vr(TM+7)}, {vr(vTb)}, s[80:81] offset:{k * 4096 // npart}"))
    if opt.get("wpf"):
        F(13, opt["wpf"]).extend([f"s_lshr_b32 {sr(sA)}, s2, 1", f"s_lshl_b32 {sr(sA)}, {sr(sA)}, 14", f"s_lshl_b32 {sr(sD)}, {sr(sW)}, 12",
                                  f"s_add_u32 {sr(sA)}, {sr(sA)}, {sr(sD)}", f"s_lshl_b32 {sr(sD)}, {sr(sKH)}, 21", f"s_add_u32 {sr(sA)}, {sr(sA)}, {sr(sD)}",
                                  f"v_lshl_add_u32 {vr(TM+6)}, {vr(vL)}, 6, {sr(sA)}",
                                  ("vm", "WP", f"global_load_dword {vr(TM+7)}, {vr(TM+6)}, s[80:81]")])
    if opt.get("tq", -9) == -3:
        F(opt.get("ti", 1), 2 * G + 13).extend(onetouch(vT0))
    if opt.get("tq", -9) == -1:
        F(opt.get("ti", 1), 2 * G + 13).extend(tlbtouch(vT0))
    F(6, 2 * G + 13).extend([f"v_mov_b32 {vr(TM+6)}, 0", ("vm", "NC", f"buffer_load_dwordx2 {vr(TM+4,2)}, {vr(TM+6)}, {sr(S_DBG,4)}, 0 offen")])
    F(10, 2 * G + 13).extend([("wait", ["NC"], None), f"v_readfirstlane_b32 {sr(sN)}, {vr(TM+4)}", f"v_readfirstlane_b32 {sr(sN+1)}, {vr(TM+5)}"])
    F(10, 2 * G + 15).extend([f"s_cmp_eq_u32 {sr(sN)}, 0", "s_cbranch_scc1 L_ncslow", "L_ncok:"])
    F(8, 2 * G + 13).extend([f"s_lshl_b32 {sr(sBt)}, {sr(sW)}, 14", f"s_mul_i32 {sr(sA)}, {sr(sMT)}, {6*TS}", f"s_add_u32 {sr(sA)}, {sr(sA)}, {sr(sBt)}",
                             f"s_lshl_b32 {sr(sBt)}, {sr(sKH)}, 16", f"s_add_u32 {sr(sA)}, {sr(sA)}, {sr(sBt)}",
                             f"s_add_u32 {sr(S_X)}, {sr(S_WS)}, {sr(sA)}", f"s_addc_u32 {sr(S_X+1)}, {sr(S_WS+1)}, 0",
                             f"s_mov_b32 {sr(S_X+2)}, {5*TS+16384}"])
    F(9, 2 * G + 13).extend([f"s_lshl_b32 {sr(sC)}, {sr(sB)}, 2", f"s_add_u32 {sr(sC)}, {sr(sC)}, {sr(sW)}",
                             f"s_mul_i32 {sr(sC)}, {sr(sC)}, {3*TS}", f"s_lshl_b32 {sr(sBt)}, {sr(sH)}, 12",
                             f"s_add_u32 {sr(sC)}, {sr(sC)}, {sr(sBt)}"])

    def norm(q):
        r = TM + 2 * q + 2
        out = [f"v_accvgpr_read_b32 {vr(r)}, {ar(LA+4*q)}"]
        if opt.get("sp1", 1) == 2:
            for op in ("v_permlane32_swap_b32", "v_permlane16_swap_b32"):
                out += [f"v_mov_b32 {vr(r+1)}, {vr(r)}", "s_nop 1", f"{op} {vr(r+1)}, {vr(r)}", "s_nop 1", f"v_add_f32 {vr(r)}, {vr(r)}, {vr(r+1)}"]
        out += [f"v_rcp_f32 {vr(r)}, {vr(r)}", "s_nop 0"]
        for jj in range(4):
            ob = OA + q * 32 + jj * 8
            out += [f"v_mul_f32 {vr(ob+e)}, {vr(ob+e)}, {vr(r)}" for e in range(8)] if opt.get("nmul") else \
                   [f"v_pk_mul_f32 {vr(ob+e,2)}, {vr(ob+e,2)}, {vr(r,2)} op_sel_hi:[1,0]" for e in range(0, 8, 2)]
            out += [f"v_cvt_pk_bf16_f32 {vr(ob+e)}, {vr(ob+2*e)}, {vr(ob+2*e+1)}" for e in range(4)]
            out.append(("vm", "ST", f"buffer_store_dwordx4 {vr(ob,4)}, {vr(vL16)}, {sr(S_WS,4)}, {sr(sC)} offen offset:{jj*1024} sc1"))
        out.append(f"s_add_u32 {sr(sC)}, {sr(sC)}, {TS}")
        return out

    f = {}
    spread(f, carry, 0, 6)
    if 8 in plan:
        spread(f, plan[8], 1, 16)
    a(("wait", None, ["k0_15"]))
    a.spine(qk(0, True), f)
    if qd:
        a(["s_memtime s[100:101]", "s_waitcnt lgkmcnt(0)", f"v_writelane_b32 {vr(vDg)}, s100, 8", f"v_writelane_b32 {vr(vDg)}, s88, 24",
           f"v_writelane_b32 {vr(vDg)}, s100, 25", f"s_lshl_b32 {sr(sA)}, s2, 2", f"s_add_u32 {sr(sA)}, {sr(sA)}, {sr(sW)}",
           f"s_lshl_b32 {sr(sA)}, {sr(sA)}, 8", f"s_add_u32 {sr(sA)}, {sr(sA)}, {WS_DIAG + (2<<20)}",
           f"v_lshlrev_b32 {vr(vT0)}, 2, {vr(vL)}", f"buffer_store_dword {vr(vDg)}, {vr(vT0)}, {sr(S_WS,4)}, {sr(sA)} offen untracked"])
    a(stamp())
    wplans = {0: {(13, 2): "D", (14, 0): "D", (14, 2): "D", (15, 0): "D", (15, 1): "DD"},
              1: {(13, 2): "D", (14, 0): "D", (14, 1): "D", (14, 2): "D", (15, 0): "DR", (15, 1): "DDR"},
              2: {(13, 2): "D", (14, 0): "D", (14, 1): "D", (14, 2): "DD", (15, 0): "RRD", (15, 1): "DDDR"},
              3: {(13, 2): "DD", (14, 0): "D", (14, 1): "DD", (14, 2): "DRR", (15, 0): "DDRR", (15, 1): "DDDDR"},
              4: {(13, 2): "DDD", (14, 1): "DDD", (14, 2): "RRRD", (15, 0): "DDRR", (15, 1): "DDDD"}}
    wplans[9] = {(15, 0): "DD", (15, 1): "DDD"}
    wplans[10] = {(14, 2): "DD", (15, 0): "DD", (15, 1): "DD"}
    wplans[11] = {(14, 1): "D", (14, 2): "DD", (15, 0): "DD", (15, 1): "DDR"}
    wplans[12] = {(14, 0): "D", (14, 1): "D", (14, 2): "DD", (15, 0): "DR", (15, 1): "DDR"}
    wplans[5] = {}
    wplans[6] = {(14, 2): "D", (15, 0): "D", (15, 1): "DD"}
    wpl = wplans.get(opt.get("wp", 1))
    il = opt.get("il", 0)
    ilsched = {}
    if il:
        n_il = opt.get("iln", 8)
        per = opt.get("ilp", 1)
        seq = []
        for k in range(n_il):
            seq.append("D" if k < 3 else "RD")
        for k in range(0, n_il, per):
            ilsched[(il + k // per, 2)] = "".join(seq[k:k + per])
        wplans[7] = {}
        wplans[8] = {(14, 2): "D", (15, 0): "D", (15, 1): "D"}
        wpl = wplans[opt.get("wp", 7)]
    avail = {((il, 2) if il else (13, 2)): ["A0", "A1", "A2"], (14, 1): ["B0", "B1", "B2"], (15, 1): ["B3", "B4"]}
    for i in range(16):
        for j in range(3):
            f = fills[(i, j)]
            jn, jp = (j + 1) % 3, (j + 2) % 3
            if (i, j) == (0, 0):
                sf = softmax_first(0)
                spread(f, sf[:44], 4, 16)
                f[15] += barrier(0)
                a.spine(qk(1, True), {g: v for g, v in f.items() if g < 16})
                a(sf[44:])
                continue
            if (i, j) == (15, 2):
                ex, cv, ors, fin_ = softmax_items(2)
                lin = []
                for e in range(16):
                    lin.append(ex[e])
                    if e >= 2 and e % 2 == 0:
                        lin.append(cv[e // 2 - 1])
                    if e in (7, 11):
                        lin.append(ors[(e - 7) // 4])
                lin += [ors[2], cv[7]] + fin_
                f = {}
                spread(f, lin, 0, 17)
                spread(f, norm(0), 3, 18)
                a.spine(pv(15, 1, sumfirst=True), f)
                continue
            if i == 0:
                ws_ = {g: [x for x in v if isinstance(x, tuple) and x[0] == "wait"] for g, v in f.items()}
                for g in f:
                    f[g] = [x for x in f[g] if not (isinstance(x, tuple) and x[0] == "wait")]
                spread(f, softmax_first(j), 2, 34)
                for g in f:
                    f[g] += ws_[g]
            free.extend(avail.get((i, j), []))
            if (i, j) in ilsched:
                its = []
                for ch in ilsched[(i, j)]:
                    its += D(free.pop(0), True) if ch == "D" else Rd()
                ok_g = [g for g in range(10, 33) if g not in (18, 28)]
                for n_, it in enumerate(its):
                    f[ok_g[(n_ * len(ok_g)) // len(its)]].append(it)
                assert rnext[0] <= 5
            if (i, j) in wpl:
                tail = f[33]; f[33] = []
                spread(f, ops(wpl[(i, j)]), 3, 33)
                assert rnext[0] <= 5
                f[33] += tail
            a.spine(qk(jn, first=(i == 0 and j < 2)) + pv(i - 1 if j == 0 else i, jp, first=(i == 0 or (i == 1 and j == 0))), f)
    a(chk(15, 2))
    a(stamp())
    if itd:
        a(["s_waitcnt lgkmcnt(0)", f"v_writelane_b32 {vr(vDg)}, s88, {36 if opt.get('itrt') else 32}", f"v_writelane_b32 {vr(vDg)}, s100, 16", f"s_lshl_b32 {sr(sA)}, s2, 2", f"s_add_u32 {sr(sA)}, {sr(sA)}, {sr(sW)}",
           f"s_lshl_b32 {sr(sA)}, {sr(sA)}, 8", f"s_add_u32 {sr(sA)}, {sr(sA)}, {WS_DIAG + (2<<20)}",
           f"v_lshlrev_b32 v2, 2, {vr(vL)}", f"buffer_store_dword {vr(vDg)}, v2, {sr(S_WS,4)}, {sr(sA)} offen untracked"])

    def wstep(dlim, rlim=NRK):
        out = []
        if (len(free) < 2 or dnext[0] >= dlim or dnext[0] - rnext[0] >= opt.get("rlag", 9)) and rnext[0] < rlim and rnext[0] < dnext[0]:
            out += Rd()
        if dnext[0] < dlim and free:
            out += D(free.pop(0))
        return out

    def wsteps(n, rlim):
        out = []
        for _ in range(n):
            out += wstep(NK, rlim)
        return out
    f = {}
    e0 = wsteps(opt.get("fd", 0), 11)
    if e0:
        spread(f, e0, 0, 18)
    spread(f, norm(1), 3, 18)
    a.spine(pv(15, 2, sumfirst=True), f)
    a(mix(["s_nop 3"] + norm(2), wsteps(opt.get("fn", 0), 15)))
    a(stamp())
    a(wsteps(opt.get("nack", 3), NRK))
    a(pubprep())
    a(("wait", ["ST"], None))
    a("s_barrier")
    free.append("B5")
    a(publish())
    a(stamp())
    steps = []
    while dnext[0] < NK or rnext[0] < opt.get("rpre", 4):
        steps.append(wstep(NK))
    pp = min(opt.get("pp", 2), len(steps))
    ACCS = [16, 112]
    RO = 64
    VOS = [[160, 161, 162], [163, 164, 165]]
    vPart, vRed, vRd, vOut, vFl = 166, 167, 168, 169, 170
    RB = 176
    PR = 224
    a([f"s_xor_b32 {sr(sBt)}, {sr(sKH)}, 1", f"s_mul_i32 {sr(sBt)}, {sr(sBt)}, {3*TS}", f"s_mul_i32 {sr(sC)}, {sr(sKH)}, {3*TS}",
       f"v_add_u32 {vr(VOS[0][0])}, {sr(sBt)}, {vr(vL16)}", f"v_add_u32 {vr(VOS[1][0])}, {sr(sC)}, {vr(vL16)}"])
    a([f"v_add_u32 {vr(VOS[p][t])}, {t*TS}, {vr(VOS[p][0])}" for p in range(2) for t in (1, 2)])
    a([f"v_add_u32 {vr(vRed)}, {sr(sLl)}, {vr(vL16)}", f"s_lshl_b32 {sr(sC)}, {sr(sW)}, 10", f"s_add_u32 {sr(sC)}, {sr(sC)}, {QEX}",
       f"v_add_u32 {vr(vRd)}, {sr(sC)}, {vr(vL16)}", f"s_mul_i32 {sr(sC)}, {sr(sW)}, 3072", f"v_add_u32 {vr(vPart)}, {sr(sC)}, {vr(vL16)}",
       f"v_and_b32 {vr(vOut)}, 15, {vr(vL)}", f"v_lshlrev_b32 {vr(vOut)}, 10, {vr(vOut)}", f"v_lshrrev_b32 v6, 4, {vr(vL)}",
       f"v_lshl_add_u32 {vr(vOut)}, v6, 3, {vr(vOut)}"])
    if pw4:
        a([f"v_and_b32 v7, 3, {vr(vL)}", f"s_lshl_b32 {sr(sBt)}, {sr(sW)}, 7", f"s_add_u32 {sr(sBt)}, {sr(sBt)}, {sr(sOwn)}",
           f"v_lshl_add_u32 v7, v7, 3, {sr(sBt)}"])
    else:
        a([f"v_and_b32 v7, 15, {vr(vL)}", f"s_cmp_eq_u32 {sr(sW)}, 0", f"s_cselect_b32 {sr(sBt)}, {sr(sOwn)}, {WS_SIZE}",
           f"v_lshl_add_u32 v7, v7, 3, {sr(sBt)}"])
    vP = 172
    a(steps[:len(steps) - pp])
    ld1 = f"buffer_load_dwordx2 {vr(vP,2)}, v7, {sr(S_WS,4)}, 0 offen sc1"
    a(("vm", "PL", ld1))
    a(steps[len(steps) - pp:])
    a(stamp())

    def pollblk(name, tag, ld, slp, allw=False):
        cmp_ = f"v_cmp_ne_u64 vcc, {sr(sN,2)}, {vr(vP,2)}"
        if not allw:
            a(f"s_cmp_lg_u32 {sr(sW)}, 0")
            a(f"s_cbranch_scc1 {name}_ok")
        sv = a.vmdone
        a(("wait", [tag], None))
        a.vmdone = sv
        a(cmp_)
        a(f"s_cbranch_vccz {name}_ok")
        a("s_mov_b32 s13, 0x100000")
        a(f"{name}:")
        a(ld + " untracked")
        a("s_waitcnt vmcnt(0)")
        a(cmp_)
        a(f"s_cbranch_vccz {name}_ok")
        if slp:
            a(f"s_sleep {slp}")
        a("s_sub_u32 s13, s13, 1")
        a(f"s_cbranch_scc0 {name}")
        a(f"{name}_ok:")
        if not allw:
            a("s_barrier")
    pollblk("L_poll2", "PL", ld1, opt.get("slp", 2), pw4)
    a(stamp())
    D_ = 4
    CH = 2
    sOf2, sPw, sPr, sPf = 46, 48, 41, 12

    deep = opt.get("deep", 0)

    def oslot(j):
        if deep and 24 <= j < 28:
            return ACCS[0] + 12 * (j - 24)
        return RO + 12 * (j % D_)

    def oload(j, q):
        b = oslot(j)
        so = sOff if (j % CH == 0) else sOf2
        return [("vm", f"O{j}_{q}", f"buffer_load_dwordx4 {vr(b+4*q,4)}, {vr(VOS[j//16][q])}, {sr(S_X,4)}, {sr(so)} offen sc1")]

    def adv():
        return [f"s_add_u32 {sr(sOff)}, {sr(sOf2)}, 1024", f"s_and_b32 {sr(sOff)}, {sr(sOff)}, 0x3fff",
                f"s_add_u32 {sr(sOf2)}, {sr(sOff)}, 1024", f"s_and_b32 {sr(sOf2)}, {sr(sOf2)}, 0x3fff"]
    a([f"s_add_u32 {sr(sOf2)}, {sr(sOff)}, 1024", f"s_and_b32 {sr(sOf2)}, {sr(sOf2)}, 0x3fff"])
    for j0 in range(0, D_, CH):
        for q in range(3):
            for kk in range(CH):
                a(oload(j0 + kk, q))
        a(adv())
    a([f"s_mul_i32 {sr(sPw)}, s2, {PSTR}", f"s_add_u32 {sr(sPw)}, {sr(sPw)}, {WS_PART}",
       f"s_xor_b32 {sr(sPf)}, s2, 1", f"s_mul_i32 {sr(sPr)}, {sr(sPf)}, {PSTR}", f"s_add_u32 {sr(sPr)}, {sr(sPr)}, {WS_PART}",
       f"s_mul_i32 {sr(sPf)}, {sr(sPf)}, {FST}", f"s_add_u32 {sr(sPf)}, {sr(sPf)}, {WS_FLG}",
       f"s_cmp_eq_u32 {sr(sW)}, 0", f"s_cselect_b32 {sr(sBt)}, {sr(sPf)}, {WS_SIZE}", f"v_mov_b32 {vr(vFl)}, {sr(sBt)}"])

    ld2 = f"buffer_load_dwordx2 {vr(vP,2)}, {vr(vFl)}, {sr(S_WS,4)}, 0 offen offset:{PFO} sc1"

    def redwrite(p):
        return [("ds", f"z{p}", f"ds_write_b128 {vr(vRed)}, {vr(ACCS[p]+4*idx,4)} offset:{idx*1024}") for idx in range(12)]

    def redread(p):
        return [("ds", f"y{p}_{q}", f"ds_read_b128 {vr(RB+(q*4+w)*4,4)}, {vr(vRd)} offset:{w*15360 + q*4096}") for q in range(3) for w in range(4)]

    def redadd(p, q, pk):
        b = RB + q * 16
        out = [("wait", None, [f"y{p}_{q}"])]
        if pk:
            out += [f"v_pk_add_f32 {vr(b+o+e,2)}, {vr(b+o+e,2)}, {vr(b+o+4+e,2)}" for e in (0, 2) for o in (0, 8)]
            out += [f"v_pk_add_f32 {vr(b+e,2)}, {vr(b+e,2)}, {vr(b+8+e,2)}" for e in (0, 2)]
        else:
            out += [f"v_add_f32 {vr(b+o+e)}, {vr(b+o+e)}, {vr(b+o+4+e)}" for e in range(4) for o in (0, 8)]
            out += [f"v_add_f32 {vr(b+e)}, {vr(b+e)}, {vr(b+8+e)}" for e in range(4)]
        return out
    extra = {16: [[]] * 4 + redwrite(0),
             18: [[("wait", None, ["z0"]), "s_barrier"]] + redread(0),
             20: [x for q in range(3) for x in redadd(0, q, False) +
                  [("vm", "S2", f"buffer_store_dwordx4 {vr(RB+q*16,4)}, {vr(vPart)}, {sr(S_WS,4)}, {sr(sPw)} offen offset:{q*1024} sc1")]]}
    ew = opt.get("ew", 2)
    rw1 = redwrite(1)
    if ew:
        extra[30] = [[]] * 8 + rw1[0:4] + [[]] * 2 + rw1[4:8]
        rw1 = rw1[8:]
        rw0 = redwrite(0)
        extra[14] = [[]] * 8 + rw0[0:4] + [[]] * 2 + rw0[4:8]
        if ew == 1:
            extra[16] = [[]] * 3 + [x for w_ in rw0[8:] for x in (w_, [])]
        else:
            extra[16] = [[]] * 3 + rw0[8:] + [[]] * 4 + [extra[18][0]] + [extra[18][1 + 2*k: 3 + 2*k] for k in range(6)]
            extra[18] = extra.pop(20)
    if opt.get("xq"):
        extra = {16: [[]] * 6 + redwrite(0) + [[]] * 6 + extra[18], 18: extra[20]}
    jsig, jpl, jck = opt.get("jsig", 24), opt.get("jpl", 28), opt.get("jck", 32)
    for j0 in range(0, 32, CH):
        p = j0 // 16
        if j0 in (2, 8, 16, 20, 24, 26, 28):
            a(stamp(True))
        if j0 == jsig:
            a(("wait", ["S2"], None))
            a("s_barrier")
            a(w0only("L_c4", 1, [f"buffer_store_dwordx2 {vr(vT0,2)}, {vr(vL16)}, {sr(S_WS,4)}, {sr(sOwn)} offen offset:{PFO} sc1 untracked"]))
        if j0 == jpl:
            a(("vm", "P2", ld2))
        if j0 == jck:
            pollblk("L_poll3", "P2", ld2, 1)
            a([("vm", f"PR{q}", f"buffer_load_dwordx4 {vr(PR+4*q,4)}, {vr(vPart)}, {sr(S_WS,4)}, {sr(sPr)} offen offset:{q*1024} sc1") for q in range(3)])
        if deep and j0 == 20:
            for jb in (24, 26):
                for q in range(3):
                    for kk in range(CH):
                        a(oload(jb + kk, q))
                a(adv())
        nxt = j0 + D_ + (4 if (deep and j0 >= 20) else 0)
        rd = list(extra.get(j0, []))
        for kk in range(CH):
            if rnext[0] < NK:
                rd += Rd()
        assert rnext[0] >= min(NK, j0 + 2 * CH)
        npq = -(-len(rd) // 18)
        for q in range(3):
            a(("wait", [f"O{j0+kk}_{q}" for kk in range(CH)], [f"t{(j0+kk)%16}" for kk in range(CH)]))
            for t in range(4):
                acc = vr(ACCS[p] + (q * 4 + t) * 4, 4)
                for kk in range(CH):
                    j = j0 + kk
                    b = oslot(j)
                    a(f"{MF} {acc}, {wreg(4*(j%16)+t)}, {vr(b+4*q,4)}, {'0' if j % 16 == 0 else acc}")
                    if t < 3:
                        for _ in range(npq):
                            if rd:
                                a(rd.pop(0))
            if nxt < 32:
                for kk in range(CH):
                    a(oload(nxt + kk, q))
        a(adv())
    a(stamp())
    a("s_nop 3")
    a(rw1)
    a(("wait", None, ["z1"]))
    if jck >= 32:
        pollblk("L_poll3", "P2", ld2, 1)
        a([("vm", f"PR{q}", f"buffer_load_dwordx4 {vr(PR+4*q,4)}, {vr(vPart)}, {sr(S_WS,4)}, {sr(sPr)} offen offset:{q*1024} sc1") for q in range(3)])
    else:
        a("s_barrier")
    a(redread(1))
    a([f"s_lshl_b32 {sr(sOff)}, {sr(sMT)}, 1", f"s_add_u32 {sr(sOff)}, {sr(sOff)}, {sr(sKH)}", f"s_mul_i32 {sr(sOff)}, {sr(sOff)}, {48*1024}",
       f"s_lshl_b32 {sr(sA)}, {sr(sNT)}, 7", f"s_add_u32 {sr(sOff)}, {sr(sOff)}, {sr(sA)}",
       f"s_lshl_b32 {sr(sA)}, {sr(sW)}, 5", f"s_add_u32 {sr(sOff)}, {sr(sOff)}, {sr(sA)}"])
    for q in range(3):
        a(redadd(1, q, True))
    for q in range(3):
        b = RB + q * 16
        a(("wait", [f"PR{q}"], None))
        a([f"v_pk_add_f32 {vr(b+e,2)}, {vr(b+e,2)}, {vr(PR+4*q+e,2)}" for e in (0, 2)])
        a(f"v_cvt_pk_bf16_f32 {vr(b)}, {vr(b)}, {vr(b+1)}")
        a(f"v_cvt_pk_bf16_f32 {vr(b+1)}, {vr(b+2)}, {vr(b+3)}")
        a(("vm", "out", f"buffer_store_dwordx2 {vr(b,2)}, {vr(vOut)}, {sr(S_OUT,4)}, {sr(sOff)} offen"))
        if q < 2:
            a(f"s_add_u32 {sr(sOff)}, {sr(sOff)}, 16384")
    if diag:
        a("s_waitcnt vmcnt(0)")
        a(stamp())
        a(f"s_memrealtime {sr(sSt + 2*nstamp[0], 2)}")
        a("s_waitcnt lgkmcnt(0)")
        n = nstamp[0]
        print("nstamps", n, file=sys.stderr)
        if opt.get("probe") is not None:
            pa, pb, mult = opt["probe"] // 100, opt["probe"] % 100, opt.get("mult", 1)
            a(f"s_sub_u32 s3, s{60+2*pb}, s{60+2*pa}")
            a(f"s_mul_i32 s3, s3, {mult}")
            a(f"s_add_u32 s3, s3, s{60+2*n}")
            a("L_spin:")
            a("s_sleep 4")
            a("s_memrealtime s[12:13]")
            a("s_waitcnt lgkmcnt(0)")
            a("s_sub_u32 s12, s12, s3")
            a("s_cmp_lt_i32 s12, 0")
            a("s_cbranch_scc1 L_spin")
            a("s_endpgm")
        if opt.get("hdiag"):
            words = [1, 2, 3, 4, 5, 6, 7, 9, 10, 11, 12, 13, 14, 15]
            a("v_mov_b32 v20, 0")
            a("v_mov_b32 v21, 256")
            a("s_not_b32 s3, s60")
            a("v_writelane_b32 v20, s3, 0")
            for i in range(n):
                a(f"v_writelane_b32 v20, s{60+2*i}, {i+1}")
            for i in range(n + 1):
                a(f"v_writelane_b32 v21, {words[i]*4}, {i}")
            a(f"buffer_atomic_umax v20, v21, {sr(S_DBG,4)}, 0 offen sc1 untracked")
            a("s_endpgm")
        a("v_mov_b32 v20, 0")
        for i in range(2 * n + 4):
            a(f"v_writelane_b32 v20, s{58+i}, {i}")
        a(f"s_lshl_b32 {sr(sA)}, s2, 2")
        a(f"s_add_u32 {sr(sA)}, {sr(sA)}, {sr(sW)}")
        a(f"s_lshl_b32 {sr(sA)}, {sr(sA)}, 8")
        a(f"s_add_u32 {sr(sA)}, {sr(sA)}, {WS_DIAG}")
        a(f"v_lshlrev_b32 v21, 2, {vr(vL)}")
        a(f"buffer_store_dword v20, v21, {sr(S_WS,4)}, {sr(sA)} offen untracked")
    a("L_end:")
    a("s_endpgm")
    a("L_ncslow:")
    a("s_mov_b32 s13, 0x100000")
    a("L_ncs2:")
    a("s_sleep 8")
    a(f"buffer_load_dwordx2 {vr(TM+4,2)}, {vr(TM+6)}, {sr(S_DBG,4)}, 0 offen offset:128 sc1 untracked")
    a("s_waitcnt vmcnt(0)")
    a(f"v_readfirstlane_b32 {sr(sN)}, {vr(TM+4)}")
    a(f"v_readfirstlane_b32 {sr(sN+1)}, {vr(TM+5)}")
    a(f"s_cmp_lg_u32 {sr(sN)}, 0")
    a("s_cbranch_scc1 L_ncok")
    a("s_sub_u32 s13, s13, 1")
    a("s_cbranch_scc0 L_ncs2")
    a("s_branch L_ncok")
    for i, j in stubs:
        a(f"L_st{i}_{j}:")
        a(f"s_call_b64 {sr(sRet,2)}, L_rare{j}")
        a(f"s_branch L_bk{i}_{j}")
    for j in range(3):
        s_, P, m = SB + 16 * j, PB + 8 * j, TM
        a(f"L_rare{j}:")
        a("s_nop 7")
        a(rowmax(j))
        a(f"v_add_f32 {vr(m)}, 0x41000000, {vr(m)}")
        a(f"v_max_f32 {vr(m)}, 0, {vr(m)}")
        for r in range(16):
            a(f"v_sub_f32 {vr(s_+r)}, {vr(s_+r)}, {vr(m)}")
        for r in range(16):
            a(f"v_exp_f32 {vr(s_+r)}, {vr(s_+r)}")
        a(f"v_sub_f32 {vr(vT0)}, 0, {vr(m)}")
        a(f"v_exp_f32 {vr(vT0)}, {vr(vT0)}")
        for r in range(4):
            a(f"v_sub_f32 {vr(CI+4*j+r)}, {vr(CI+4*j+r)}, {vr(m)}")
        for r in range(8):
            a(f"v_cvt_pk_bf16_f32 {vr(P+r)}, {vr(s_+2*r)}, {vr(s_+2*r+1)}")
        for r in range(32):
            a(f"v_mul_f32 {vr(OA+32*j+r)}, {vr(OA+32*j+r)}, {vr(vT0)}")
        for r in range(4):
            a(f"v_accvgpr_read_b32 {vr(vT1)}, {ar(LA+4*j+r)}")
            a(f"v_mul_f32 {vr(vT1)}, {vr(vT1)}, {vr(vT0)}")
            a(f"v_accvgpr_write_b32 {ar(LA+4*j+r)}, {vr(vT1)}")
        a("s_nop 1")
        a(f"s_setpc_b64 {sr(sRet,2)}")
    a("L_codeend:")


def generate(opt):
    k = f"{NAME}_kernel"
    out = f"""; GQA block: q = x@wq, softmax(q k^T / sqrt(128)) v, @wo  -- one fused launch, 256 workgroups (one per (batch, head)).
; @launch grid=(256,1,1) block=(256,1,1) lds={LDS}
.amdgcn_target "amdgcn-amd-amdhsa--gfx950"
.text
.globl {k}
.p2align 8
.type {k},@function
"""
    a = Em()
    gen(a, opt)
    out += a.text()
    out += f""".section .rodata,"a"
.p2align 6
.amdhsa_kernel {k}
  .amdhsa_next_free_vgpr 512
  .amdhsa_next_free_sgpr 102
  .amdhsa_accum_offset 256
  .amdhsa_group_segment_fixed_size 0
  .amdhsa_kernarg_size 64
  .amdhsa_user_sgpr_count 2
  .amdhsa_user_sgpr_kernarg_segment_ptr 1
  .amdhsa_system_sgpr_workgroup_id_x 1
  .amdhsa_float_denorm_mode_32 3
.end_amdhsa_kernel
"""
    return out


if __name__ == "__main__":
    opt = {}
    path = f"cdna_kernels/{NAME}.s"
    for arg in sys.argv[1:]:
        if arg.startswith("-o="):
            path = arg[3:]
        elif "=" in arg:
            k, v = arg.split("=")
            opt[k] = int(v)
        else:
            opt[arg] = True
    txt = generate(opt)
    open(path, "w").write(txt)
    import hazard
    errs = hazard.check(txt)
    print("wrote", path, "hazards", len(errs))
    for e in errs[:20]:
        print("  ", e)
```
